```python
import torch

def _softmax(x, axis=-1):
    return torch.softmax(x, dim=axis)
def _gelu(x):
    return torch.nn.functional.gelu(x, approximate="tanh")
def _silu(x):
    return torch.nn.functional.silu(x)
def _sigmoid(x):
    return torch.sigmoid(x)
def _layernorm(x, axis=-1, eps=1e-5):
    m = x.mean(dim=axis, keepdim=True)
    v = x.var(dim=axis, keepdim=True, unbiased=False)
    return (x - m) / torch.sqrt(v + eps)
def _scatter_add(tgt, idx, src, axis=0):
    return tgt.clone().index_add_(axis, idx, src)
def _segment_sum(src, seg, n):
    out = torch.zeros((n,) + src.shape[1:], dtype=src.dtype)
    return out.index_add_(0, seg, src)
def _pad(x, pw):
    flat = tuple(v for pair in reversed(pw) for v in pair)
    return torch.nn.functional.pad(x, flat)

kernel_name = 'standalone__sliding_block_cached__decode'

def setup_inputs():

    _w = (lambda a: (lambda t: t.to(torch.bfloat16) if t.is_floating_point() else t)(torch.as_tensor(a)))
    B, Sq, D = 8, 1, 448
    Hq, Hkv, Sk, Dh = 16, 8, 8192, 256
    assert Hq % Hkv == 0, (Hq, Hkv)
    return {
        "x": _w((lambda *s: torch.randn(*s, dtype=torch.bfloat16) * 0.8)(B, Sq, D)),
        "k_cache": _w((lambda *s: torch.randn(*s, dtype=torch.bfloat16) * 0.8)(B, Hkv, Sk, Dh)),
        "v_cache": _w((lambda *s: torch.randn(*s, dtype=torch.bfloat16) * 0.05)(B, Hkv, Sk, Dh)),
        "wq": _w((lambda *s: torch.randn(*s, dtype=torch.bfloat16) * 0.8)(D, Hq * Dh) * (D ** -0.5)),
        "wo": _w((lambda *s: torch.randn(*s, dtype=torch.bfloat16) * 0.05)(Hq * Dh, D) * ((Hq * Dh) ** -0.5)),
    }

def reference(x, k_cache, v_cache, wq, wo):
    B, Sq, D = x.shape
    Hq, Dh = 16, 256
    Hkv, Sk = k_cache.shape[1], k_cache.shape[2]
    W = min(4096, max(256, Sk // 4))
    rep = Hq // Hkv
    q = (lambda x, *d: x.permute(*d))((x @ wq).reshape(B, Sq, Hq, Dh), 0, 2, 1, 3)
    k = (lambda x, n, axis: torch.repeat_interleave(x, n, dim=axis))(k_cache[:, :, Sk - W:, :], rep, axis=1)
    v = (lambda x, n, axis: torch.repeat_interleave(x, n, dim=axis))(v_cache[:, :, Sk - W:, :], rep, axis=1)
    scores = torch.einsum("bhqd,bhkd->bhqk", q, k) * (Dh ** -0.5)
    p = _softmax(scores, axis=-1)
    o = torch.einsum("bhqk,bhkd->bhqd", p, v)
    return (lambda x, *d: x.permute(*d))(o, 0, 2, 1, 3).reshape(B, Sq, Hq * Dh) @ wo
```

```python
import sys, math, struct
KN = "standalone__sliding_block_cached__decode_kernel"

HEADER = """; Kernarg layout for this problem (64 bytes, ptrs only, base s[0:1]):
"""

XG = 0x1000
QX = 0x400000
SX = 0x100000
OX = 0x200000
PB = 0x300000
STAMP = 0x20000000
L_WO = 0
L_WQ = 114688
L_P = L_WQ + 16384
L_ST = L_P + 4 * 4352
L_O = L_ST + 256
L_Q = L_O + 2048
L_END = L_Q + 1024

def hexf(x): return "0x%08x" % struct.unpack("<I", struct.pack("<f", x))[0]

def cost(t):
    m = t.split()[0]
    if m.startswith("v_mfma"): return 16
    if m in ("v_exp_f32", "v_rcp_f32"): return 8
    if m.startswith("ds_read_b64_tr"): return 16
    if m.startswith("ds_"): return 8
    if m == "s_nop": return 4 * (int(t.split()[1]) + 1)
    if m == "s_waitcnt" and "lgkm" in t: return 100
    if m == "s_barrier": return 60
    return 4

def sizes(L):
    import subprocess, re, os, tempfile
    d = tempfile.mkdtemp()
    open(d + "/a.s", "w").write("\n".join(L) + "\n")
    subprocess.run(["clang", "-x", "assembler", "-target", "amdgcn-amd-amdhsa", "-mcpu=gfx950", "-c", d + "/a.s", "-o", d + "/a.o"], check=True)
    o = subprocess.run(["llvm-objdump", "-d", d + "/a.o"], capture_output=True, text=True).stdout
    o = o[o.index("<" + KN + ">:"):]
    return [len(m.group(1).split()) * 4 for m in re.finditer(r"// [0-9A-F]{12}: ([0-9A-F ]+?)(?: <.*)?$", o, re.M)]

def paginate(L, eoff):
    isins = lambda t: t.startswith("    ") and not t.strip().startswith((";", "."))
    h = L.index("@HOP")
    def hopcode(n):
        c = []
        for k in range(n): c += [f"    s_cmp_eq_u32 s48, {k+1}", f"    s_cbranch_scc1 L_pg{k}"]
        return c + ["L_back:"]
    for n in (1, 2, 3):
        M = L[:h] + hopcode(n) + L[h+1:]
        T = M + [f"L_pg{k}:" for k in range(n)]
        e = M.index('.section .rodata,"a"')
        sz = iter(sizes(M[:e] + [f"L_pg{k}:" for k in range(n)] + M[e:]))
        out = []; off = eoff; k = 0; start = M.index(KN + ":"); nat = eoff >= 2048
        for i, t in enumerate(M):
            if i > start and i < e and isins(t):
                b = next(sz)
                if off + b + 4 > 4096:
                    if nat: out += ["    s_branch L_pn", ".p2align 12", "L_pn:"]; off = 0; nat = False
                    else:
                        out += [f"    s_branch L_pc{k}", ".p2align 12", f"L_pg{k}:", "    s_branch L_back", f"L_pc{k}:"]; off = 4; k += 1
                off += b
            out.append(t)
        if k == n: return out
    assert False

class G:
    def __init__(s):
        s.L = []; s.vm = 0; s.nst = 0; s.cyc = 0; s.done = -1
    def A(s, t): s.L.append("    " + t); s.cyc += cost(t)
    def lab(s, t): s.L.append(t + ":")
    def C(s, t): s.L.append("    ; " + t)
    def vmem(s, t):
        s.A(t); s.vm += 1; return s.vm - 1
    def wait(s, i):
        n = s.vm - 1 - i
        if s.done >= i: return
        assert n <= 63, n
        s.A(f"s_waitcnt vmcnt({n})"); s.done = i

def gen(D=6, D0=None, wq_at=(2, 6, 10, 14), wo0=16, wo_step=1, KP=44, VP=24, BUD=260, stamps=False, xmap=1, spin=200000,
        wo_mod="nt", wq_mod="nt", x_mod="", pst=(), DV=None, no_wo=False, no_s=False, no_q=False, crot=0, Dfun=None, few=False, Dd=None, thr=None, rank0=None, wf_at=None, dsx=0, BUDf=None, pure=0, st_mod='sc1', st_mask=None, st_cnt=True, ld_n=4, ld_mod='sc1', st_at=70, pub_mod='sc1', poll_mod='sc1', out_mod='sc1', red_mod='sc1', dbg=False, wo_late=False, dyn=None, fb=None, rotu=None, rotj=None, krot=0, xchk=True, xg_at=(12, 60), pre_at=7, oxsep=0, xg_mod='sc1 nt', tnp=1, tord=0, fmod='', no_red=False, dummy=(), dummy_mod='', tlb_o=None, tlb_v=None, tlb_vn=1, endwait=False, tlb_omod='', vx=None, vtab=None, bmax=None, rowmap=0, wo_list=None, wo_a=(), wo_b=(), q3=False, eoff=None, hop=None, ep_at=None, hopsel=None, er_at=None, er2=False, kpat=None, wo_hack=False, q4=False, fin_mod='', clean=None, cl_mod='sc1', cl_sel=3, qs=None, wqt=None, cgx=0):
    if q4: kpat = 'q4'
    g = G(); A = g.A
    global L_P, L_ST, L_O, L_Q, L_END
    NQ = 5 if q3 else 4
    L_P = L_WQ + NQ * 4096; L_ST = L_P + 4 * 4352; L_O = L_ST + 256; L_Q = L_O + 2048; L_END = L_Q + 1024
    assert len(wq_at) == NQ
    if D0 is None: D0 = D
    if DV is None: DV = D
    def stamp(name):
        if stamps and not (few and name in ("q ok", "scores ok", "softmax done", "scores published", "wq landed", "q published")):
            r = 70 + 2 * g.nst
            assert r <= 100
            A(f"s_memrealtime s[{r}:{r+1}]"); g.nst += 1
    g.L.append(HEADER.rstrip())
    g.L.append(f"; @launch grid=(256,1,1) block=(256,1,1) lds={L_END}")
    g.L += ['.amdgcn_target "amdgcn-amd-amdhsa--gfx950"', ".text", f".globl {KN}"] + ([".p2align 8"] if eoff is None else [".p2align 12"] + ([f".fill {((eoff - 768) % 4096) // 4}, 4, 0xbf810000"] if (eoff - 768) % 4096 else [])) + [f".type {KN},@function", f"{KN}:"]
    A("s_load_dwordx16 s[4:19], s[0:1], 0")
    stamp("start")
    A("s_cmp_ge_u32 s2, 256"); A("s_cbranch_scc1 L_end")
    A("v_lshrrev_b32 v1, 6, v0"); A("v_and_b32 v0, 63, v0")
    if xmap == 1:
        A("s_and_b32 s52, s2, 3"); A("s_lshr_b32 s53, s2, 2")
        if dsx: A(f"s_xor_b32 s52, s52, {dsx}")
    elif xmap == 0:
        A("s_and_b32 s55, s2, 7"); A("s_lshr_b32 s58, s2, 3"); A("s_and_b32 s52, s58, 3"); A("s_lshr_b32 s54, s58, 2")
        A("s_lshl_b32 s53, s54, 3"); A("s_add_u32 s53, s53, s55")
        if dsx: A(f"s_xor_b32 s52, s52, {dsx}")
    if bmax: A(f"s_cmp_ge_u32 s54, {bmax}"); A("s_cbranch_scc1 L_end")
    A("v_readfirstlane_b32 s48, v1")
    def dohop():
        if hopsel == "ds3": A("s_cmp_lg_u32 s52, 3"); A("s_cbranch_scc1 L_back")
        if hopsel == "one": A("s_lshr_b32 s58, s2, 3"); A("s_cmp_lg_u32 s58, 3"); A("s_cbranch_scc1 L_back")
        g.L.append("@HOP")
    if hop == "early": dohop()
    A("v_and_b32 v14, 7, v0"); A("v_lshrrev_b32 v15, 3, v0")
    def rowoff(dst, src):
        if rowmap == 0: A(f"v_lshlrev_b32 v{dst}, 9, v{src}")
        elif rowmap == 1: A(f"v_lshlrev_b32 v{dst}, 11, v{src}")
        elif rowmap == 2:
            A(f"v_and_b32 v{dst}, 6, v{src}"); A(f"v_lshlrev_b32 v{dst}, 2, v{dst}"); A(f"v_and_or_b32 v{dst}, v{src}, 1, v{dst}"); A(f"v_lshlrev_b32 v{dst}, 9, v{dst}")
        elif rowmap == 3:
            A(f"v_and_b32 v{dst}, 4, v{src}"); A(f"v_lshlrev_b32 v{dst}, 2, v{dst}"); A(f"v_and_or_b32 v{dst}, v{src}, 3, v{dst}"); A(f"v_lshlrev_b32 v{dst}, 9, v{dst}")
    rowoff(1, 14); A("v_lshl_add_u32 v1, v15, 4, v1")
    if kpat == "lin": A("v_lshlrev_b32 v1, 4, v0")
    if kpat == "v": A("v_lshlrev_b32 v1, 9, v15"); A("v_lshl_add_u32 v1, v14, 4, v1")
    if kpat == "q4":
        A("v_bfe_u32 v1, v0, 2, 2"); A("v_lshlrev_b32 v1, 9, v1"); A("v_lshrrev_b32 v5, 4, v0"); A("v_lshl_add_u32 v1, v5, 6, v1"); A("v_and_b32 v5, 3, v0"); A("v_lshl_add_u32 v1, v5, 4, v1")
    koff = {None: lambda j: j*128, "v": lambda j: j*128, "lin": lambda j: j*1024, "q4": lambda j: (j & 1)*256 + (j >> 1)*2048}[kpat]
    A("s_lshl_b32 s50, s53, 22"); A(f"s_add_u32 s50, s50, {6144*512}")
    A(f"s_lshl_b32 s58, s48, {(12, 9, 10, 11)[rowmap]}"); A("s_add_u32 s50, s50, s58")
    A("s_lshl_b32 s58, s52, 7"); A("s_add_u32 s51, s50, s58")
    A("s_lshl_b32 s58, s52, 18"); A("s_add_u32 s50, s50, s58")
    A("s_mov_b32 s23, 0x20000"); A("s_mov_b32 s22, 0x10000000")
    A("s_mov_b32 s35, 0x20000"); A("s_mov_b32 s39, 0x20000"); A(f"s_mov_b32 s34, {448*4096*2}"); A(f"s_mov_b32 s38, {8*448*2}")
    assert xmap == 0
    A("v_lshlrev_b32 v12, 13, v15"); A("v_lshl_add_u32 v12, v14, 4, v12")
    A("v_mul_u32_u24 v13, 896, v14"); A("v_lshrrev_b32 v10, 4, v0"); A("v_lshl_add_u32 v13, v10, 4, v13")
    WQS = 8*8192
    if wqt:
        A("s_mul_i32 s69, s52, 320"); A("s_lshl_b32 s68, s69, 12")
        if wqt == "x1":
            A(f"s_mul_i32 s58, s48, {40*8192}"); A("s_add_u32 s68, s68, s58")
            A("s_lshl_b32 s58, s55, 3"); A("s_add_u32 s58, s58, s54"); A("s_xor_b32 s58, s58, 1"); A("s_lshl_b32 s58, s58, 7"); A("s_add_u32 s68, s68, s58")
        elif wqt == "s32":
            A("v_lshlrev_b32 v12, 15, v15"); A("v_lshl_add_u32 v12, v14, 4, v12"); WQS = 32*8192
            A(f"s_mul_i32 s58, s48, {8192}"); A("s_add_u32 s68, s68, s58")
            A("s_lshl_b32 s58, s55, 3"); A("s_add_u32 s58, s58, s54"); (A(f"s_xor_b32 s58, s58, {cgx}") if cgx else None); A("s_lshl_b32 s58, s58, 7"); A("s_add_u32 s68, s68, s58")
        elif wqt == "s20":
            A(f"v_mul_u32_u24 v12, {20*8192}, v15"); A("v_lshl_add_u32 v12, v14, 4, v12"); WQS = 8192
            A(f"s_mul_i32 s58, s48, {5*8192}"); A("s_add_u32 s68, s68, s58")
            A("s_lshl_b32 s58, s55, 3"); A("s_add_u32 s58, s58, s54"); (A(f"s_xor_b32 s58, s58, {cgx}") if cgx else None); A("s_lshl_b32 s58, s58, 7"); A("s_add_u32 s68, s68, s58")
        elif wqt == "w256":
            A("v_lshlrev_b32 v12, 13, v10"); A("v_and_b32 v5, 15, v0"); A("v_lshl_add_u32 v12, v5, 4, v12"); WQS = 4*8192
            A(f"s_mul_i32 s58, s48, {20*8192}"); A("s_add_u32 s68, s68, s58")
            A("s_and_b32 s58, s54, 1"); A(f"s_mul_i32 s58, s58, {80*8192}"); A("s_add_u32 s68, s68, s58")
            A("s_lshl_b32 s58, s55, 3"); A("s_add_u32 s58, s58, s54"); A("s_andn2_b32 s58, s58, 1"); A("s_lshl_b32 s58, s58, 7"); A("s_add_u32 s68, s68, s58")
        elif wqt == "rot":
            A("v_add_u32 v5, s54, v15"); A("v_and_b32 v5, 7, v5"); A("v_lshl_add_u32 v12, v5, 7, v12")
            A(f"s_mul_i32 s58, s48, {40*8192}"); A("s_add_u32 s68, s68, s58")
            A("s_lshl_b32 s58, s55, 10"); A("s_add_u32 s68, s68, s58")
        A("s_cmp_eq_u32 s52, 3"); A("s_cselect_b32 s69, 0x10000, s69")
        A("s_mul_i32 s57, s48, 5120"); A(f"s_add_u32 s57, s57, {L_WQ}")
    elif qs:
        assert q3 and sum(qs) == 56 and qs[2] == 20
        if qs[0] == qs[1]: A(f"s_mul_i32 s69, s52, {qs[0]*16}")
        else: A(f"s_mul_i32 s69, s52, {qs[0]*16}"); A("s_cmp_eq_u32 s52, 2"); A(f"s_cselect_b32 s69, {36*16}, s69")
        A("s_cmp_eq_u32 s52, 3"); A("s_cselect_b32 s69, 0x10000, s69")
        A("s_lshl_b32 s68, s69, 12"); A(f"s_mul_i32 s58, s48, {40*8192}"); A("s_add_u32 s68, s68, s58")
        A("s_lshl_b32 s58, s55, 3"); A("s_add_u32 s58, s58, s54"); (A(f"s_xor_b32 s58, s58, {cgx}") if cgx else None); A("s_lshl_b32 s58, s58, 7"); A("s_add_u32 s68, s68, s58")
        A("s_lshl_b32 s96, s48, 2"); A("s_sub_u32 s96, s96, s52")
        A("s_mul_i32 s57, s48, 5120"); A(f"s_add_u32 s57, s57, {L_WQ}")
    elif q3:
        A("s_mul_i32 s69, s52, 320")
        A("s_lshl_b32 s68, s69, 12"); A(f"s_mul_i32 s58, s48, {40*8192}"); A("s_add_u32 s68, s68, s58")
        A("s_lshl_b32 s58, s55, 3"); A("s_add_u32 s58, s58, s54"); (A(f"s_xor_b32 s58, s58, {cgx}") if cgx else None); A("s_lshl_b32 s58, s58, 7"); A("s_add_u32 s68, s68, s58")
        A("s_cmp_eq_u32 s52, 3"); A("s_cselect_b32 s69, 0x10000, s69")
        A("s_mul_i32 s57, s48, 5120"); A(f"s_add_u32 s57, s57, {L_WQ}")
    else:
        A("s_lshl_b32 s69, s52, 8"); A("s_cmp_eq_u32 s52, 3"); A("s_cselect_b32 s69, 704, s69")
        A("s_lshl_b32 s68, s69, 12"); A("s_lshl_b32 s58, s48, 18"); A("s_add_u32 s68, s68, s58")
        A("s_lshl_b32 s58, s55, 3"); A("s_add_u32 s58, s58, s54"); (A(f"s_xor_b32 s58, s58, {cgx}") if cgx else None); A("s_lshl_b32 s58, s58, 7"); A("s_add_u32 s68, s68, s58")
        A("s_lshl_b32 s58, s52, 2"); A("s_add_u32 s58, s58, s48"); A("s_cmp_eq_u32 s58, 11"); A("s_cselect_b32 s68, 0x400000, s68")
        A("s_lshl_b32 s57, s48, 12"); A(f"s_add_u32 s57, s57, {L_WQ}")
    if krot:
        A(f"s_mul_i32 s100, s52, {krot << 14}"); A(f"s_and_b32 s100, s100, {16*16384-1}"); A("s_mov_b32 s98, s50"); A("s_add_u32 s50, s98, s100")
    if rotu:
        for t_ in rotu: A(t_)
        A("s_and_b32 s100, s100, 15"); A("s_and_b32 s101, s101, 63"); A("s_lshl_b32 s100, s100, 14"); A("s_lshl_b32 s101, s101, 14")
        A("s_mov_b32 s98, s50"); A("s_mov_b32 s99, s51"); A("s_add_u32 s50, s98, s100"); A("s_add_u32 s51, s99, s101")
    if rotj:
        for t_ in rotj: A(t_)
        for j in range(4):
            A(f"s_add_u32 s58, s97, {j}"); A("s_and_b32 s58, s58, 3"); A("s_lshl_b32 s58, s58, 7"); A(f"v_add_u32 v{116+j}, s58, v1")
    A("s_waitcnt lgkmcnt(0)")
    A("s_mov_b32 s20, s6"); A("s_mov_b32 s21, s7")
    ids = {}
    def issue(p):
        if p < 64:
            u, j = divmod(p, 4)
            if rotj: ids[p] = g.vmem(f"buffer_load_dwordx4 a[{4*p}:{4*p+3}], v{116+j}, s[20:23], s50 offen nt")
            else: ids[p] = g.vmem(f"buffer_load_dwordx4 a[{4*p}:{4*p+3}], v1, s[20:23], s50 offen offset:{koff(j)} nt")
            if j == 3 and p != 63:
                if rotu or krot: A("s_add_u32 s100, s100, 16384"); A(f"s_and_b32 s100, s100, {16*16384-1}"); A("s_add_u32 s50, s98, s100")
                else: A("s_add_u32 s50, s50, 16384")
        else:
            t = p - 64
            if vx == "t":
                A(f"s_xor_b32 s58, s51, {(t & 3) << 7}")
                ids[p] = g.vmem(f"buffer_load_dwordx4 a[{4*t}:{4*t+3}], v2, s[24:27], s58 offen nt")
            elif vx == "t4":
                A(f"s_xor_b32 s58, s51, {((t >> 2) & 3) << 7}")
                ids[p] = g.vmem(f"buffer_load_dwordx4 a[{4*t}:{4*t+3}], v2, s[24:27], s58 offen nt")
            else: ids[p] = g.vmem(f"buffer_load_dwordx4 a[{4*t}:{4*t+3}], v2, s[24:27], s51 offen nt")
            if t != 63:
                if rotu or vtab: A("s_add_u32 s101, s101, 16384"); A(f"s_and_b32 s101, s101, {64*16384-1}"); A("s_add_u32 s51, s99, s101")
                else:
                    vo = lambda t: ((t & 48) + (((t & 15) + (t >> 4) * krot) & 15)) * 16384
                    dl = vo(t + 1) - vo(t)
                    A(f"s_add_u32 s51, s51, {dl}" if dl > 0 else f"s_sub_u32 s51, s51, {-dl}")
    wq_last = [None]; m0c = [None]
    def wq_issue(i):
        A("s_mov_b32 m0, s57"); m0c[0] = None
        if qs:
            c = [d_ for d_ in range(2) if qs[d_] - 15 == i]
            if len(c) == 2: A("s_cmp_ge_i32 s96, 11"); A("s_cselect_b32 s68, 0x10000000, s68")
            elif c: A(f"s_cmp_eq_u32 s96, {12 - c[0]}"); A("s_cselect_b32 s68, 0x10000000, s68")
            else: A("s_nop 0")
        elif i == NQ - 1:
            A("s_cmp_ge_u32 s52, 2"); A("s_cselect_b32 s69, 0x10000, s69")
        else: A("s_nop 0")
        g.vmem(f"buffer_load_dwordx4 v12, s[32:35], s68 offen {wq_mod} lds")
        wq_last[0] = g.vmem(f"buffer_load_dwordx4 v[{144+4*i}:{147+4*i}], v13, s[36:39], s69 offen offset:{i*64} {x_mod}")
        if i < NQ - 1: A(f"s_add_u32 s68, s68, {WQS}"); A("s_add_u32 s57, s57, 1024")
    issue(0)
    A("s_load_dword s49, s[18:19], 0")
    A("s_mov_b32 s32, s10"); A("s_mov_b32 s33, s11"); A("s_mov_b32 s36, s4"); A("s_mov_b32 s37, s5")
    for p in range(1, D0):
        issue(p)
        if p in wq_at and not no_q: wq_issue(wq_at.index(p))
    stamp("issued")
    if hop == "late": dohop()
    def setup():
        if xmap == 1: A("s_lshr_b32 s54, s53, 3"); A("s_and_b32 s55, s53, 7")
        rowoff(2, 15); A("v_lshl_add_u32 v2, v14, 4, v2")
        if vx == "w": A("s_lshl_b32 s58, s48, 7"); A("s_xor_b32 s51, s51, s58")
        if vx == "row":
            A("v_and_b32 v3, 3, v15"); A("v_xor_b32 v3, s52, v3"); A("v_lshl_add_u32 v2, v3, 7, v2"); A("s_andn2_b32 s51, s51, 0x180")
        if isinstance(vx, int):
            A("s_andn2_b32 s51, s51, 0x300180"); A("s_lshl_b32 s58, s52, 20"); A("s_add_u32 s51, s51, s58"); A(f"s_add_u32 s51, s51, {vx << 7}")
        if vtab:
            A("s_andn2_b32 s99, s51, 0x180")
            for i, (bo, ro) in enumerate(vtab):
                A(f"s_cmp_eq_u32 s52, {i}"); A(f"s_cselect_b32 s58, {bo & 0xffffffff}, 0"); A("s_add_u32 s99, s99, s58")
                if i == 0: A("s_mov_b32 s101, 0")
                A(f"s_cmp_eq_u32 s52, {i}"); A(f"s_cselect_b32 s58, {(ro & 63) << 14}, 0"); A("s_add_u32 s101, s101, s58")
            A("s_add_u32 s51, s99, s101")
        A("v_lshlrev_b32 v3, 4, v0")
        A("v_lshlrev_b32 v4, 3, v0")
        for r in (27, 31, 43, 47): A(f"s_mov_b32 s{r}, 0x20000")
        A("s_mov_b32 s26, 0x10000000"); A("s_mov_b32 s30, 0x40000000")
        A(f"s_mov_b32 s42, {448*4096*2}"); A(f"s_mov_b32 s46, {8*448*2}")
        A("s_mov_b32 s24, s8"); A("s_mov_b32 s25, s9"); A("s_mov_b32 s28, s18"); A("s_mov_b32 s29, s19")
        A("s_mov_b32 s40, s12"); A("s_mov_b32 s41, s13"); A("s_mov_b32 s44, s14"); A("s_mov_b32 s45, s15")
        A("s_lshl_b32 s56, s55, 1"); A("s_lshr_b32 s58, s48, 1"); A("s_add_u32 s56, s56, s58"); A("s_lshl_b32 s56, s56, 2"); A("s_add_u32 s56, s56, s52")
        A(f"s_mul_i32 s56, s56, {64*896}"); A("s_and_b32 s58, s48, 1"); A("s_mul_i32 s58, s58, 28672"); A("s_add_u32 s56, s56, s58")
        A("s_mul_i32 s3, s48, 28672")
        A("v_and_b32 v5, 1, v0")
        A("v_mov_b32 v6, 0xffff"); A("v_lshlrev_b32 v7, 4, v5"); A("v_lshlrev_b32 v11, v7, v6")
        A("v_lshrrev_b32 v5, 1, v14")
        for j in range(4):
            A(f"v_cmp_eq_u32 vcc, {j}, v5"); A("s_nop 1"); A(f"v_cndmask_b32 v{6+j}, 0, v11, vcc")
        A(f"s_mul_i32 s58, s48, 4352"); A(f"s_add_u32 s58, s58, {L_P}")
        if q4:
            A("v_and_b32 v5, 1, v0"); A("v_lshlrev_b32 v5, 2, v5"); A("v_and_or_b32 v5, v0, 2, v5"); A("v_lshrrev_b32 v11, 5, v0"); A("v_or_b32 v5, v5, v11"); A("v_mul_u32_u24 v11, 544, v5")
            A("v_and_b32 v5, 12, v0"); A("v_lshl_add_u32 v11, v5, 1, v11"); A("v_and_b32 v5, 1, v10"); A("v_lshl_add_u32 v11, v5, 2, v11"); A("v_add_u32 v136, s58, v11")
        else:
            A("v_mul_u32_u24 v11, 544, v5"); A("v_lshl_add_u32 v11, v15, 3, v11"); A("v_and_b32 v5, 1, v0"); A("v_lshl_add_u32 v11, v5, 2, v11"); A("v_add_u32 v136, s58, v11")
        A("v_bfe_u32 v5, v0, 3, 1"); A("v_lshl_add_u32 v5, v5, 2, v10"); A("v_mul_u32_u24 v11, 544, v5"); A("v_add_u32 v137, s58, v11")
        A("v_bfe_u32 v5, v0, 2, 2"); A("v_lshl_add_u32 v5, v10, 3, v5"); A("v_mul_u32_u24 v5, 896, v5"); A("v_and_b32 v11, 3, v0"); A("v_lshl_add_u32 v5, v11, 3, v5")
        A("s_mul_i32 s58, s48, 224"); A("v_add_u32 v138, s58, v5"); A(f"v_add_u32 v139, {64*896}, v138")
        A("v_lshrrev_b32 v5, 5, v0"); A("v_lshlrev_b32 v5, 7, v5"); A("v_lshl_add_u32 v5, v14, 4, v5"); A("v_bfe_u32 v11, v0, 4, 1"); A("v_lshl_add_u32 v5, v11, 3, v5")
        A("v_bfe_u32 v11, v0, 3, 1"); A("v_lshl_add_u32 v5, v11, 10, v5"); A("s_lshl_b32 s58, s48, 8"); A(f"s_add_u32 s58, s58, {L_O}"); A("v_add_u32 v140, s58, v5")
        A("v_and_b32 v5, 3, v0"); A("v_lshlrev_b32 v5, 8, v5"); A("v_lshl_add_u32 v5, v10, 4, v5"); A(f"v_add_u32 v141, {L_O}, v5")
        if q4:
            A("v_and_b32 v11, 1, v0"); A("v_lshlrev_b32 v11, 7, v11")
            A("s_lshl_b32 s58, s48, 5"); A(f"s_add_u32 s58, s58, {L_ST}"); A("v_lshl_add_u32 v5, v10, 3, v11"); A("v_add_u32 v142, s58, v5")
            A("v_and_b32 v5, 14, v0"); A("v_lshl_add_u32 v5, v5, 3, v11"); A(f"v_add_u32 v143, {L_ST}, v5")
        else:
            A("s_lshl_b32 s58, s48, 6"); A(f"s_add_u32 s58, s58, {L_ST}"); A("v_lshlrev_b32 v5, 4, v10"); A("v_add_u32 v142, s58, v5")
            A("v_and_b32 v5, 15, v0"); A("v_lshlrev_b32 v5, 4, v5"); A(f"v_add_u32 v143, {L_ST}, v5")
        A(f"s_mov_b32 s67, {hexf(math.log2(math.e)/16)}")
        A("v_bfe_u32 v5, v0, 2, 2"); A("v_lshl_add_u32 v5, v10, 3, v5"); A("v_lshlrev_b32 v5, 7, v5"); A("v_and_b32 v11, 3, v0"); A("v_lshl_add_u32 v5, v11, 3, v5")
        A("s_lshl_b32 s58, s48, 5"); A(f"s_add_u32 s58, s58, {L_WQ}"); A("v_add_u32 v108, s58, v5")
        A("v_lshlrev_b32 v111, 13, v14"); A("v_lshl_add_u32 v111, v10, 4, v111")
        A("s_lshl_b32 s58, s48, 8"); A(f"s_add_u32 s58, s58, {L_Q}"); A("v_and_b32 v5, 31, v0"); A("v_lshl_add_u32 v112, v5, 3, s58"); A("v_lshrrev_b32 v5, 5, v0"); A("v_lshl_add_u32 v112, v5, 2, v112")
        if q4:
            A("v_and_b32 v5, 1, v0"); A("v_lshlrev_b32 v5, 9, v5"); A("v_lshl_add_u32 v5, v10, 6, v5"); A("v_and_b32 v11, 12, v0"); A("v_lshl_add_u32 v5, v11, 2, v5"); A(f"v_add_u32 v113, {L_Q}, v5")
        else:
            A("v_bfe_u32 v5, v0, 1, 1"); A("v_lshlrev_b32 v5, 9, v5"); A("v_lshl_add_u32 v5, v10, 5, v5"); A("v_and_b32 v11, 1, v0"); A("v_lshl_add_u32 v5, v11, 4, v5"); A(f"v_add_u32 v113, {L_Q}, v5")
        A("s_lshl_b32 s60, s55, 16"); A(f"s_add_u32 s60, s60, {QX}")
        CG = "s66" if cgx else "s54"
        if cgx: A(f"s_xor_b32 s66, s54, {cgx}")
        A(f"s_lshr_b32 s58, {CG}, 1"); A("s_lshl_b32 s58, s58, 2"); A("s_add_u32 s58, s58, s52"); A("s_lshl_b32 s58, s58, 1"); A(f"s_and_b32 s66, {CG}, 1"); A("s_add_u32 s58, s58, s66")
        A("s_lshl_b32 s58, s58, 2"); A("s_add_u32 s58, s58, s48"); A("s_lshl_b32 s58, s58, 6"); A("s_add_u32 s59, s60, s58")
        A("s_lshl_b32 s66, s54, 13"); A("s_add_u32 s60, s60, s66")
        A("s_lshl_b32 s58, s52, 2"); A("s_add_u32 s58, s58, s48"); A("s_lshl_b32 s58, s58, 9"); A("s_add_u32 s65, s60, s58")
        A("s_lshl_b32 s58, s48, 11"); A("s_add_u32 s60, s60, s58")
        A("s_lshl_b32 s61, s53, 2"); A("s_add_u32 s61, s61, s48")
        A("s_lshl_b32 s61, s61, 11"); A(f"s_add_u32 s61, s61, {SX}")
        A("s_lshl_b32 s62, s52, 9"); A("s_add_u32 s62, s62, s61")
        A("s_lshl_b32 s63, s55, 2"); A("s_add_u32 s63, s63, s52")
        A("s_lshl_b32 s64, s63, 6"); A("s_add_u32 s64, s64, s66"); A(f"s_add_u32 s64, s64, {QX}")
        if oxsep: A(f"s_add_u32 s64, s64, {oxsep}"); A(f"s_add_u32 s65, s65, {oxsep}")
        A("s_mov_b32 s12, 0x07060501"); A("s_mov_b32 s13, 0x07060100"); A("s_mov_b32 s14, 0x07060302"); A("s_mov_b32 s15, 0x0706000c"); A("s_mov_b32 s16, 0x05040100")
        A("v_mov_b32 v116, -1"); A("v_mov_b32 v117, -1")
        if wo_a:
            assert not fb
            A("s_cmp_eq_u32 s52, 3"); A("s_cselect_b64 s[4:5], -1, 0"); A("s_not_b64 s[6:7], s[4:5]")
        if isinstance(rank0, int):
            A("s_and_b32 s0, s2, 7"); A(f"s_bitcmp1_b32 {rank0:#x}, s0"); A("s_cselect_b32 s0, 255, 0")
        if dyn:
            A("s_and_b32 s1, s2, 7"); A(f"s_bitcmp1_b32 {dyn['himask']:#x}, s1"); A("s_cselect_b32 s1, 1, 0")
            A("s_cmp_eq_u32 s52, 3"); A("s_cselect_b32 s101, 1, 0")
        if rank0 == "dsodd":
            A("s_bitcmp1_b32 s52, 0"); A("s_cselect_b32 s0, 255, 0")
        if rank0 == "dshi":
            A("s_bitcmp1_b32 s52, 1"); A("s_cselect_b32 s0, 255, 0")
        if rank0 == "lo3":
            A("s_cmp_lt_u32 s2, 24"); A("s_cselect_b32 s0, 255, 0")
        if rank0 == "cls3":
            A("s_lshr_b32 s0, s2, 5"); A("s_cmp_eq_u32 s0, 3"); A("s_cselect_b32 s0, 255, 0")
    XS = 's97' if clean else 's58'
    assert not (clean and (er_at or rotj))
    def setup2():
        A("s_waitcnt lgkmcnt(0)")
        if fb:
            A("s_mov_b32 s18, 256"); A("s_mov_b32 s19, 0x20000")
            A("s_getreg_b32 s1, hwreg(HW_REG_XCC_ID, 0, 3)"); A(f"s_lshl_b32 s1, s1, 7"); A(f"s_add_u32 s1, s1, {PB}")
            A("s_lshr_b32 s58, s2, 3"); A("s_add_u32 s4, s58, s1")
            A("s_cmp_eq_u32 s48, 0"); A("s_cselect_b32 s4, s4, 0x7f000000")
            A("s_and_b32 s5, s58, 3"); A("s_lshl_b32 s66, s48, 2"); A("s_add_u32 s5, s5, s66")
            A("s_lshr_b32 s7, s58, 2"); A("s_add_u32 s7, s7, s1"); A("s_add_u32 s7, s7, 32")
            A("v_and_b32 v123, 39, v0"); A("v_cmp_gt_u32 vcc, 32, v0"); A("s_nop 1"); A("v_cndmask_b32 v123, v123, v0, vcc")
            A(f"s_mov_b32 s0, {fb['D0']}"); A("s_mov_b32 s8, 0"); A("s_mov_b32 s9, 0")
            if fb.get("gp"):
                A("s_cmp_eq_u32 s5, 15"); A("s_cselect_b32 s58, s7, 0x7f000000"); A("v_mov_b32 v122, 32"); A("s_mov_b64 exec, 1")
                g.vmem("buffer_store_byte v122, off, s[28:31], s58"); A("s_mov_b64 exec, -1")
            if fb.get("ds3"): A("s_cmp_eq_u32 s52, 3"); A("s_cselect_b32 s101, 1, 0")
        A("s_mul_i32 s49, s49, 0x0019660D"); A("s_add_u32 s49, s49, 0x3C6EF35F")
        A("v_mov_b32 v114, s49"); A("s_xor_b32 s17, s49, 0x00020002")
        if xchk:
            A("s_getreg_b32 s10, hwreg(HW_REG_XCC_ID, 0, 4)"); A("s_lshl_b32 s10, s10, 1"); A("s_add_u32 s10, s10, s49")
            A("s_lshl_b32 s11, s55, 7"); A(f"s_add_u32 s11, s11, {XG}")
            A("s_lshr_b32 s58, s2, 3"); A("s_lshl_b32 s58, s58, 2"); A("s_add_u32 s58, s58, s11"); A("s_cmp_eq_u32 s48, 0"); A(f"s_cselect_b32 {XS}, s58, 0x7f000000")
            A("v_mov_b32 v110, s10"); A("v_and_b32 v109, 31, v0"); A("v_lshlrev_b32 v109, 2, v109"); A("s_mov_b64 exec, 1")
            g.vmem(f"buffer_store_dword v110, off, s[28:31], {XS}"); A("s_mov_b64 exec, -1")
    setup()
    if ep_at is None: setup2()

    wo_at = wo_list or [wo0 + int(wo_step*i) for i in range(28)]
    assert len(wo_a) == len(wo_b) and len(wo_at) + len(wo_a) == 28
    wo_n = [0]; wo_last = [None]; wo_c = {None: 0, "a": len(wo_at), "b": len(wo_at)}
    def wo_issue(cls=None, p=None):
        q = wo_c[cls]; wo_c[cls] += 1
        if cls != "a": wo_n[0] += 1
        if wo_a:
            if m0c[0] != q // 4:
                A(f"s_add_u32 m0, s3, {(q // 4) * 4096}"); A(f"s_add_u32 s96, s56, {(q // 4) * 4096}"); m0c[0] = q // 4
            if cls: A(f"s_mov_b64 exec, s[{'4:5' if cls == 'a' else '6:7'}]")
            wo_last[0] = g.vmem(f"buffer_load_dwordx4 v3, s[40:43], s96 offen offset:{(q%4)*1024} {wo_mod} lds")
            if cls: A("s_mov_b64 exec, -1")
            return
        if q % 4 == 0 and q: A("s_add_u32 s56, s56, 4096"); A("s_add_u32 s3, s3, 4096")
        if q % 4 == 0 or m0c[0] is None:
            A("s_mov_b32 m0, s3"); A("s_nop 0"); m0c[0] = 0
        if not no_wo: wo_last[0] = g.vmem(f"buffer_load_dwordx4 v3, s[40:43], s56 offen offset:{(q%4)*1024} {wo_mod} lds")

    def qpoll():
        last = None
        for k in range(2):
            r = 32 + k*4
            last = g.vmem(f"buffer_load_dwordx4 v[{r}:{r+3}], v3, s[28:31], s60 offen offset:{k*1024} {poll_mod}")
        return last
    xg = []; pre = []; PRE = "buffer_store_dwordx2 v[116:117], v4, s[28:31], s62"
    def publish(name, ins, mask=None, slow=None):
        def st(mod):
            if mask: A(f"s_mov_b32 exec_lo, {mask:#x}"); A(f"s_mov_b32 exec_hi, {mask:#x}")
            return f"{ins} offen {mod}"
        if not xchk:
            i = g.vmem(st(pub_mod))
        else:
            g.wait(xg[-1])
            A("v_cmp_ne_u32 vcc, s10, v115"); A(f"s_cbranch_vccz L_{name}_fast")
            if slow: A(f"{slow} offen {pub_mod}"); A("s_waitcnt vmcnt(0)")
            A(st(pub_mod)); A(f"s_branch L_{name}_pub")
            g.lab(f"L_{name}_fast")
            i = g.vmem(st(fmod))
            g.lab(f"L_{name}_pub")
        if mask: A("s_mov_b64 exec, -1")
        return i
    def pack24(r, tag):
        A(f"v_perm_b32 v80, v{r}, v{r+1}, s12"); A(f"v_perm_b32 v81, v{r+1}, v{tag}, s13")
        A(f"v_perm_b32 v82, v{r+2}, v{r+3}, s12"); A(f"v_perm_b32 v83, v{r+3}, v{tag}, s14")
    def chk24(r, tag):
        A(f"v_perm_b32 v5, v{r+3}, v{r+1}, s16"); A(f"v_perm_b32 v11, v{r+7}, v{r+5}, s16")
        A(f"v_xor_b32 v5, {tag}, v5"); A(f"v_xor_b32 v11, {tag}, v11"); A("v_or_b32 v5, v5, v11")
        A("v_cmp_ne_u32 vcc, 0, v5")
    def sum24(r):
        for k in range(4): A(f"v_perm_b32 v{r+1+2*k}, v{r+1+2*k}, v{r+2*k}, s15")
        for k in range(4): A(f"v_add_f32 v{r+k}, v{r+k}, v{r+4+k}")
        A("s_nop 0")
        A(f"v_permlane32_swap_b32 v{r}, v{r+2}"); A(f"v_permlane32_swap_b32 v{r+1}, v{r+3}")
        A("s_nop 0")
        A(f"v_add_f32 v{r}, v{r}, v{r+2}"); A(f"v_add_f32 v{r+1}, v{r+1}, v{r+3}")
    def spoll():
        last = None
        for sp in range(4):
            r = 32 + sp*2
            last = g.vmem(f"buffer_load_dwordx2 v[{r}:{r+1}], v4, s[28:31], s61 offen offset:{sp*512} {poll_mod}")
        return last
    def schk():
        A("v_max3_u32 v5, v32, v33, v34"); A("v_max3_u32 v11, v35, v36, v37"); A("v_max3_u32 v5, v5, v38, v39"); A("v_max_u32 v5, v5, v11")
        A("v_cmp_eq_u32 vcc, -1, v5")
    def check(name, chk, repoll):
        A(f"s_mov_b32 s66, {spin}")
        g.lab(f"L_{name}_chk")
        chk()
        A(f"s_cbranch_vccz L_{name}_ok")
        sv = g.vm; repoll(); g.vm = sv
        A("s_sub_u32 s66, s66, 1"); A("s_cmp_eq_u32 s66, 0"); A("s_cbranch_scc1 L_end")
        A("s_waitcnt vmcnt(0)")
        A(f"s_branch L_{name}_chk")
        g.lab(f"L_{name}_ok")

    st = dict(q_ok=False, s_ok=False, landed=-1, qk=0, pv=0)
    def t_qproj():
        g.wait(wq_last[0])
        stamp("wq landed")
        A("s_barrier")
        for i in range(NQ):
            for hh in range(2):
                r = 164 + 4*i + 2*hh
                A(f"ds_read_b64_tr_b16 v[{r}:{r+1}], v108 offset:{i*4096 + hh*512}")
        yield
        A("s_waitcnt lgkmcnt(0)")
        for i in range(NQ):
            A(f"v_mfma_f32_16x16x32_bf16 v[64:67], v[{164+4*i}:{167+4*i}], v[{144+4*i}:{147+4*i}], {'0' if i == 0 else 'v[64:67]'}")
        yield
        A("s_nop 7")
        pack24(64, 114)
        g.wait(pre[0])
        publish("q", "buffer_store_dwordx4 v[80:83], v111, s[28:31], s59", 0x00ff00ff, PRE)
        stamp("q published")
        yield
        if q4:
            for r in range(16, 32): A(f"v_mov_b32 v{r}, 0")
            yield
    def t_qshare(qp):
        g.wait(qp)
        if not no_q: check("q", lambda: chk24(32, "s49"), qpoll)
        sum24(32)
        A("v_cvt_pk_bf16_f32 v32, v32, v33")
        A("ds_write_b32 v112, v32")
        if not no_wo and not wo_late: g.wait(wo_last[0])
        A("s_waitcnt lgkmcnt(0)"); A("s_barrier")
        if q4:
            for j in range(4):
                if j % 2 == 0:
                    mk = 0x33333333 << j
                    A(f"s_mov_b32 exec_lo, {mk:#x}"); A(f"s_mov_b32 exec_hi, {mk:#x}")
                A(f"ds_read_b128 v[{16+4*j}:{19+4*j}], v113 offset:{(j&1)*256}")
            A("s_mov_b64 exec, -1")
        else:
            for j in range(4): A(f"ds_read_b128 v[{16+4*j}:{19+4*j}], v113 offset:{j*128}")
        yield
        A("s_waitcnt lgkmcnt(0)")
        stamp("q ok")
        st["q_ok"] = True
        yield
    def t_wofrag():
        n = 0
        for tau in range(7):
            for kk in range(4):
                for hh in range(2):
                    r = 144 + (tau*4 + kk)*4 + hh*2
                    base = 138 + (kk >> 1)
                    A(f"ds_read_b64_tr_b16 v[{r}:{r+1}], v{base} offset:{((kk&1)*32 + hh*4)*896 + tau*32}")
                    n += 1
                    if n % 4 == 0: yield
    def qk_packgrp(u):
        a = 64 + 4*(u % 3); z = u >> 3; gg = (u >> 1) & 3; c1 = u & 1
        if q4:
            t = u & 3; d = 76 + (u >> 2)
            for k in range(1, 4):
                b = (t + k) & 3
                A(f"v_add_f32_dpp v{d}, v{a+b}, v{a+t if k == 1 else d} row_ror:{4*((t-b)&3)} row_mask:0xf bank_mask:{1<<t:#x}")
            return
        for h in range(2):
            t = 76 + z*2 + h
            if c1 == 0: A(f"v_add_f32_dpp v{t}, v{a+2*h+1}, v{a+2*h} row_ror:8 row_mask:{1<<gg:#x} bank_mask:0x3")
            else:       A(f"v_add_f32_dpp v{t}, v{a+2*h}, v{a+2*h+1} row_ror:8 row_mask:{1<<gg:#x} bank_mask:0xc")
    def pk4(u):
        a = 64 + 4*(u % 3); t = u & 3; d = 76 + (u >> 2); o = []
        for k in range(1, 4):
            b = (t + k) & 3
            o.append(f"v_add_f32_dpp v{d}, v{a+b}, v{a+t if k == 1 else d} row_ror:{4*((t-b)&3)} row_mask:0xf bank_mask:{1<<t:#x}")
        return o
    def qk_group():
        u = st["qk"]; a = 64 + 4*(u % 3)
        g.wait(ids[4*u+3])
        pk = pk4(u-2) if (q4 and u >= 2) else []
        if pk and u == 2: A("s_nop 3")
        if pk and u == 3: A("s_nop 0")
        for j in range(4):
            p = 4*u + j
            if pk and j % 2 == 0: A(pk[j // 2])
            ops = [f"v[{16+4*j}:{19+4*j}]", f"a[{4*p}:{4*p+3}]"]
            if q4: ops.reverse()
            A(f"v_mfma_f32_16x16x32_bf16 v[{a}:{a+3}], {ops[0]}, {ops[1]}, {'0' if j == 0 else f'v[{a}:{a+3}]'}")
        st["qk"] += 1
        if pk: A(pk[2])
        elif u >= 2: qk_packgrp(u-2)
        if u == 15:
            if q4:
                for uu in (14, 15):
                    for t_ in pk4(uu): A("s_nop 1"); A(t_)
            else:
                A("s_nop 1"); qk_packgrp(14); A("s_nop 3"); qk_packgrp(15)
                A("s_nop 0")
            A("v_cvt_pk_bf16_f32 v80, v76, v77"); A("v_cvt_pk_bf16_f32 v81, v78, v79")
            A("v_min_u32 v80, -2, v80"); A("v_min_u32 v81, -2, v81")
            publish("s", "buffer_store_dwordx2 v[80:81], v4, s[28:31], s62")
            stamp("scores published")
    def rowred(op, regs, srcs=None):
        for i, sh in enumerate((8, 4, 2, 1)):
            for k, r in enumerate(regs):
                s_ = srcs[k] if (srcs and i == 0) else r
                A(f"{op}_dpp v{r}, v{s_}, v{s_} row_ror:{sh} row_mask:0xf bank_mask:0xf")
            A("s_nop 0")
    def t_softmax(sp_):
        g.wait(sp_)
        if not no_s: check("s", schk, spoll)
        stamp("scores ok")
        yield
        for sp in range(4):
            for z in range(2):
                i = sp*2 + z; r = 32 + i
                A(f"v_lshlrev_b32 v{48+i}, 16, v{r}"); A(f"v_and_b32 v{56+i}, 0xffff0000, v{r}")
        yield
        for h in range(2):
            b = 48 + 8*h; m = 68 + 2*h
            A(f"v_max3_f32 v{m}, v{b}, v{b+1}, v{b+2}"); A(f"v_max3_f32 v{m}, v{m}, v{b+3}, v{b+4}"); A(f"v_max3_f32 v{m}, v{m}, v{b+5}, v{b+6}"); A(f"v_max_f32 v{m}, v{m}, v{b+7}")
        A("s_nop 1")
        rowred("v_max_f32", [68, 70])
        yield
        A("v_mul_f32 v66, s67, v68"); A("v_mul_f32 v67, s67, v70")
        for h in range(2):
            for i in range(8):
                r = 48 + 8*h + i
                A(f"v_fma_f32 v{r}, v{r}, s67, -v{66+h}")
        yield
        for r in range(48, 64):
            A(f"v_exp_f32 v{r}, v{r}")
            if r == 55: yield
        A("s_nop 0")
        yield
        for h in range(2):
            b = 48 + 8*h; l = 69 + 2*h
            A(f"v_add_f32 v{l}, v{b}, v{b+1}")
            for i in range(2, 8): A(f"v_add_f32 v{l}, v{l}, v{b+i}")
        A("s_nop 1")
        yield
        rowred("v_add_f32", [69, 71])
        A("s_mov_b32 exec_lo, 0x00010001"); A("s_mov_b32 exec_hi, 0x00010001")
        A("ds_write_b128 v142, v[68:71]")
        A("s_mov_b64 exec, -1")
        yield
        if wo_late and not no_wo:
            assert wo_n[0] == 28 or wo_hack
            if not wo_hack: g.wait(wo_last[0])
        A("s_waitcnt lgkmcnt(0)"); A("s_barrier")
        A("ds_read_b128 v[72:75], v143")
        yield
        A("s_waitcnt lgkmcnt(0)"); A("s_nop 1")
        rowred("v_max_f32", [76, 77], [72, 74])
        for h in range(2):
            A(f"v_sub_f32 v{72+2*h}, v{72+2*h}, v{76+h}"); A(f"v_sub_f32 v{68+2*h}, v{68+2*h}, v{76+h}")
        yield
        for h in range(2):
            A(f"v_mul_f32 v{72+2*h}, s67, v{72+2*h}"); A(f"v_mul_f32 v{68+2*h}, s67, v{68+2*h}")
        for h in range(2):
            A(f"v_exp_f32 v{72+2*h}, v{72+2*h}"); A(f"v_exp_f32 v{68+2*h}, v{68+2*h}")
        A("s_nop 0")
        for h in range(2): A(f"v_mul_f32 v{73+2*h}, v{72+2*h}, v{73+2*h}")
        A("s_nop 1")
        yield
        rowred("v_add_f32", [73, 75])
        A("v_rcp_f32 v73, v73"); A("v_rcp_f32 v75, v75"); A("s_nop 0")
        A("v_mul_f32 v68, v68, v73"); A("v_mul_f32 v70, v70, v75")
        yield
        for h in range(2):
            for i in range(8):
                r = 48 + 8*h + i
                A(f"v_mul_f32 v{r}, v{r}, v{68+2*h}")
        yield
        for h in range(2):
            for i in range(8):
                r = 48 + 8*h + i
                A(f"v_cvt_pk_bf16_f32 v{r}, v{r}, v{r}")
        yield
        for h in range(2):
            for i in range(8):
                r = 48 + 8*h + i; sp, z = divmod(i, 2)
                A(f"ds_write_b32 v136, v{r} offset:{h*2176 + sp*128 + z*64}")
            yield
        A("s_waitcnt lgkmcnt(0)")
        A("ds_read_b128 v[100:103], v137")
        yield
        A("s_waitcnt lgkmcnt(0)")
        aprep(0)
        stamp("softmax done")
        st["s_ok"] = True
        yield
    def rowred2(op, r, src=None):
        for i, sh in enumerate((8, 4, 2)):
            A("s_nop 1")
            A(f"{op}_dpp v{r}, v{r}, v{r} row_ror:{sh} row_mask:0xf bank_mask:0xf")
    def t_softmax4(sp_):
        g.wait(sp_)
        if not no_s: check("s", schk, spoll)
        stamp("scores ok")
        yield
        for i in range(8):
            A(f"v_lshlrev_b32 v{48+2*i}, 16, v{32+i}"); A(f"v_and_b32 v{49+2*i}, 0xffff0000, v{32+i}")
        yield
        A("v_max3_f32 v68, v48, v49, v50")
        for i in range(51, 63, 2): A(f"v_max3_f32 v68, v68, v{i}, v{i+1}")
        A("v_max_f32 v68, v68, v63")
        rowred2("v_max_f32", 68)
        yield
        A("v_mul_f32 v66, s67, v68")
        for r in range(48, 64): A(f"v_fma_f32 v{r}, v{r}, s67, -v66")
        yield
        for r in range(48, 64):
            A(f"v_exp_f32 v{r}, v{r}")
            if r == 55: yield
        yield
        A("v_add_f32 v69, v48, v49")
        for r in range(50, 64): A(f"v_add_f32 v69, v69, v{r}")
        yield
        rowred2("v_add_f32", 69)
        A("s_mov_b32 exec_lo, 0x00030003"); A("s_mov_b32 exec_hi, 0x00030003")
        A("ds_write_b64 v142, v[68:69]")
        A("s_mov_b64 exec, -1")
        yield
        if wo_late and not no_wo:
            assert wo_n[0] == 28
            g.wait(wo_last[0])
        A("s_waitcnt lgkmcnt(0)"); A("s_barrier")
        A("ds_read_b128 v[72:75], v143")
        yield
        A("s_waitcnt lgkmcnt(0)")
        A("v_max_f32 v76, v72, v74")
        rowred2("v_max_f32", 76)
        for r in (72, 74, 68): A(f"v_sub_f32 v{r}, v{r}, v76")
        for r in (72, 74, 68): A(f"v_mul_f32 v{r}, s67, v{r}")
        yield
        for r in (72, 74, 68): A(f"v_exp_f32 v{r}, v{r}")
        A("v_mul_f32 v73, v72, v73"); A("v_fma_f32 v73, v74, v75, v73")
        rowred2("v_add_f32", 73)
        A("v_rcp_f32 v73, v73"); A("s_nop 0")
        A("v_mul_f32 v68, v68, v73")
        yield
        for r in range(48, 64): A(f"v_mul_f32 v{r}, v{r}, v68")
        yield
        for r in range(48, 64): A(f"v_cvt_pk_bf16_f32 v{r}, v{r}, v{r}")
        yield
        for i in range(16):
            A(f"ds_write_b32 v136, v{48+i} offset:{i*32}")
            if i == 7: yield
        yield
        A("s_waitcnt lgkmcnt(0)")
        A("ds_read_b128 v[100:103], v137")
        yield
        A("s_waitcnt lgkmcnt(0)")
        aprep(0)
        stamp("softmax done")
        st["s_ok"] = True
        yield
    def aprep(m):
        b = 92 + 4*(m & 1)
        for j in range(4): A(f"v_and_b32 v{b+j}, v{100 + (m & 7)}, v{6+j}")
    def pv_unit():
        t = st["pv"]
        if t % 2 == 0 and t + 2 < 64:
            r = 100 + 4*(((t+2)//2) & 1)
            A(f"ds_read_b128 v[{r}:{r+3}], v137 offset:{(t+2)*8}")
        aprep(2*t+1)
        g.wait(ids[64+t])
        A(f"v_mfma_f32_16x16x32_bf16 v[84:87], v[92:95], a[{4*t}:{4*t+3}], {'0' if t == 0 else 'v[84:87]'}"); g.cyc -= 8
        if t + 1 < 64:
            if t % 2 == 1: A("s_waitcnt lgkmcnt(0)"); g.cyc -= 96
            aprep(2*t+2)
        else:
            A("s_nop 0")
        A(f"v_mfma_f32_16x16x32_bf16 v[88:91], v[96:99], a[{4*t}:{4*t+3}], {'0' if t == 0 else 'v[88:91]'}"); g.cyc -= 8
        st["pv"] += 1

    def raddr(b2):
        A("v_bfe_u32 v5, v0, 2, 2"); A("v_lshlrev_b32 v5, 11, v5"); A("v_lshl_add_u32 v5, v10, 16, v5"); A("v_and_b32 v11, 3, v0"); A("v_lshl_add_u32 v16, v11, 4, v5")
        A(f"s_add_u32 {b2}, s64, {4*65536}"); A(f"s_mov_b32 s66, {spin}")
    def oaddr(so):
        A("v_lshlrev_b32 v17, 5, v10"); A("v_lshl_add_u32 v17, v11, 1, v17")
        A(f"s_lshr_b32 {so}, s63, 3"); A(f"s_mul_i32 {so}, {so}, 224"); A("s_mul_i32 s60, s54, 896"); A(f"s_add_u32 {so}, {so}, s60")
        A("s_and_b32 s60, s63, 3"); A("s_lshl_b32 s60, s60, 3"); A(f"s_add_u32 {so}, {so}, s60")
        A("s_and_b32 s60, s63, 4"); A("s_lshl_b32 s60, s60, 5"); A(f"s_add_u32 {so}, {so}, s60")
        A("s_cmp_eq_u32 s60, 0"); A("s_cselect_b32 s61, 0x000f000f, 15")
    RB2 = "s97" if er_at else "s65"
    RL = [f"buffer_load_dwordx4 v[48:51], v16, s[28:31], s64 offen {red_mod}", f"buffer_load_dwordx4 v[52:55], v16, s[28:31], {RB2} offen {red_mod}"]
    er = []
    active = []
    qp = None; sp_ = None; wf = None
    started = set()
    Dp = Dfun if Dfun else (lambda p: D if p < 64 + D else DV)
    p = D0
    fbq = {}; fbg = {}; fbn = [0, 0]
    def fb_pre(p):
        for c, (idv, k) in list(fbq.items()):
            if p == c + fb["lat"]:
                g.wait(idv)
                A(f"s_mov_b32 s0, {fb['Dbase']}")
                for x, t in fb["thr"](c):
                    A(f"v_cmp_le_u32 vcc, {c + x}, v{126 + k % 2}"); A("s_bcnt1_i32_b32 s58, vcc_lo")
                    A(f"s_cmp_ge_u32 s58, {t}"); A("s_addc_u32 s0, s0, 0")
                for x, t in (fb["gthr"](c) if fb.get("gp") else []):
                    A(f"v_cmp_le_u32 vcc, {x}, v{126 + k % 2}"); A("s_bcnt1_i32_b32 s58, vcc_hi")
                    A(f"s_cmp_ge_u32 s58, {4*t}"); A("s_addc_u32 s0, s0, 0")
                if fb.get("ds3") and p >= 66: A("s_add_u32 s0, s0, s101")
                if stamps: A(f"s_add_u32 s{8 if p < 64 else 9}, s{8 if p < 64 else 9}, s0"); fbn[0 if p < 64 else 1] += 1
        for c, (idv, j) in list(fbg.items()):
            if p == c + fb["glat"]:
                g.wait(idv)
                A("s_mov_b64 exec, 1")
                g.vmem(f"buffer_store_byte v{120 + j % 2}, off, s[28:31], s6"); A("s_mov_b64 exec, -1")
    def fb_post(p):
        if p in fb["pub"]:
            k = fb["pub"].index(p)
            A(f"v_mov_b32 v{124 + k % 2}, {p}"); A("s_mov_b64 exec, 1")
            g.vmem(f"buffer_store_byte v{124 + k % 2}, off, s[28:31], s4 {fb.get('st', '')}")
            A("s_mov_b64 exec, -1")
        if p in fb.get("gp", []):
            j = fb["gp"].index(p)
            A(f"s_cmp_eq_u32 s5, {j & 15}"); A(f"s_cselect_b32 s58, 0, 0x1000"); A("s_cselect_b32 s6, s7, 0x7f000000")
            A(f"v_mov_b32 v{120 + j % 2}, 1"); A("s_mov_b64 exec, 1")
            fbg[p] = (g.vmem(f"buffer_atomic_add v{120 + j % 2}, off, s[16:19], s58 offset:{(j&1)*128 + (j>>1)*4} sc0 sc1"), j)
            A("s_mov_b64 exec, -1")
        if p in fb["cps"]:
            k = fb["cps"].index(p)
            fbq[p] = (g.vmem(f"buffer_load_ubyte v{126 + k % 2}, v123, s[28:31], s1 offen {fb.get('ld', 'nt')}"), k)
    if fb: dyn = dict(Dmin=fb["Dmin"], Dmax=fb["Dmax"], sched={})
    def dynwait(p):
        if fb: fb_pre(p)
        if p in dyn["sched"]:
            base, ah, a3 = dyn["sched"][p]
            A(f"s_mul_i32 s0, s1, {ah}"); A(f"s_mul_i32 s58, s101, {a3}"); A("s_add_u32 s0, s0, s58"); A(f"s_add_u32 s0, s0, {base}")
        dmax = dyn["Dmax"](p) if callable(dyn["Dmax"]) else dyn["Dmax"]
        dmin = dyn["Dmin"](p) if callable(dyn["Dmin"]) else dyn["Dmin"]
        if p - dmax >= 0: g.wait(ids[p - dmax])
        used = False
        for d in range(dmax - 1, dmin - 1, -1):
            if p - d < 0 or g.done >= ids[p - d]: continue
            A(f"s_cmp_gt_u32 s0, {d}"); A(f"s_cbranch_scc1 L_dp{p}"); A(f"s_waitcnt vmcnt({g.vm - 1 - ids[p - d]})"); used = True
        if used: g.lab(f"L_dp{p}")
        return dmax
    if pure:
        for p in range(D0, 128):
            if dyn: dynwait(p)
            elif thr and p >= Dd:
                g.wait(ids[p - Dd])
                A(f"s_cmp_gt_u32 s0, {thr(p)}"); A(f"s_cbranch_scc1 L_dp{p}")
                A(f"s_waitcnt vmcnt({g.vm - 1 - ids[p - Dp(p)]})")
                g.lab(f"L_dp{p}")
            else: g.wait(ids[p - Dp(p)])
            issue(p)
            if fb: fb_post(p)
            if p in pst: stamp(f"p{p}")
            if pure >= 2 and p == st_at and st_mod is not None:
                if st_mask: A(f"s_mov_b64 exec, {st_mask}")
                g.vmem(f"buffer_store_dwordx4 v[80:83], v3, s[28:31], s62 offen {st_mod}")
                if st_mask: A(f"s_mov_b64 exec, -1")
            if pure >= 3 and p == 64 + VP:
                for sp in range(ld_n): g.vmem(f"buffer_load_dwordx4 v[{32+4*sp}:{35+4*sp}], v3, s[28:31], s61 offen offset:{sp*1024} {ld_mod}")
            if pure >= 4 and p in (50, 97): A("s_barrier")
        A("s_waitcnt vmcnt(0)")
        p = 128; st["pv"] = 64; wo_n[0] = 28
    while p < 128 or st["pv"] < 64:
        d = Dp(p)
        if p < 128:
            t_ = thr(p) if thr else None
            if dyn: d = dynwait(p)
            elif t_ is None:
                g.wait(ids[max(p - d, 0)])
            else:
                g.wait(ids[max(p - Dd, 0)])
                if g.done < ids[p - d]:
                    A(f"s_cmp_gt_u32 s0, {t_}"); A(f"s_cbranch_scc1 L_dp{p}")
                    A(f"s_waitcnt vmcnt({g.vm - 1 - ids[p - d]})")
                    g.lab(f"L_dp{p}")
                d = Dd
            if p >= 64:
                assert st["q_ok"]
                while st["qk"] <= (p - 64)//4: qk_group()
            issue(p)
            if fb: fb_post(p)
            if p in pst: stamp(f"p{p}")
            if p in wq_at and not no_q: wq_issue(wq_at.index(p))
            for _ in range(wo_at.count(p)): wo_issue(None, p)
            if p in wo_a: wo_issue("a", p)
            if p in wo_b: wo_issue("b", p)
            if p == ep_at: setup2()
            if p == pre_at: pre.append(g.vmem(f"{PRE} offen {fmod if xchk else pub_mod}"))
            if xchk and p in xg_at: xg.append(g.vmem(f"buffer_load_dword v115, v109, s[28:31], s11 offen {xg_mod}"))
            if p in dummy:
                A(f"s_add_u32 s58, s62, {0x1000000 + 0x100000 * dummy.index(p)}")
                g.vmem(f"buffer_store_dwordx4 v[80:83], v3, s[28:31], s58 offen {dummy_mod}")
            if p == tlb_o:
                A("s_mul_i32 s58, s54, 896")
                g.vmem(f"buffer_load_dword v118, off, s[44:47], s58 {tlb_omod}")
            if p == tlb_v:
                if tlb_vn == 1: g.vmem(f"buffer_load_dword v118, off, s[24:27], s51 nt")
                else:
                    A(f"v_and_b32 v118, {tlb_vn-1}, v0"); A(f"v_mul_u32_u24 v118, {(1<<20)//tlb_vn}, v118")
                    g.vmem(f"buffer_load_dword v118, v118, s[24:27], s51 offen nt")
            if p == er_at:
                assert st["s_ok"]
                A("s_cmp_eq_u32 s48, 0"); A("s_cselect_b32 s64, s64, 0x7f000000")
                raddr(RB2); g.vmem(RL[0]); er.append(g.vmem(RL[1])); oaddr("s59")
            if p == clean:
                assert st["qk"] == 16
                if cl_sel & 4: A("s_mov_b32 exec_lo, 0x00010001"); A("s_mov_b32 exec_hi, 0x00010001")
                if cl_sel & 1: g.vmem(f"buffer_store_dwordx2 v[80:81], v4, s[28:31], s62 offen {cl_mod}")
                A("s_mov_b64 exec, 1")
                if cl_sel & 2: g.vmem(f"buffer_store_dword v110, off, s[28:31], s97 {cl_mod}")
                A("s_mov_b64 exec, -1")
            if p == KP: qp = qpoll()
            if p == 64 + VP:
                assert st["qk"] == 16
                sp_ = spoll()
        landed = min(p - d, 127) if p < 128 else 127
        if not no_q and "qproj" not in started and p >= wq_at[-1] + d: active.append(t_qproj()); started.add("qproj")
        if qp is not None and "qshare" not in started and p >= (KP if wo_late else max(KP, wo_at[-1])) + d:
            active.append(t_qshare(qp)); started.add("qshare")
        if "qshare" in started and "wf" not in started and p >= (wf_at or 0) and not wo_late: active.append(t_wofrag()); started.add("wf")
        if wo_late and st["s_ok"] and "wf" not in started: wf = t_wofrag(); started.add("wf")
        if wf is not None:
            try: next(wf)
            except StopIteration: wf = None
        if sp_ is not None and "softmax" not in started and p >= 64 + VP + d: active.insert(0, (t_softmax4 if q4 else t_softmax)(sp_)); started.add("softmax")
        c0 = g.cyc
        while g.cyc - c0 < (BUDf(p) if BUDf else BUD) or p >= 128:
            if st["q_ok"] and st["qk"] < 16 and 4*st["qk"] + 3 <= landed: qk_group(); continue
            if st["s_ok"] and st["pv"] < 64 and 64 + st["pv"] <= landed and not active: pv_unit(); continue
            if active:
                try: next(active[0])
                except StopIteration: active.pop(0)
                continue
            break
        p += 1
    assert wo_n[0] == 28 and st["pv"] == 64 and not active and wf is None
    stamp("V done")
    A("s_nop 7")
    for r in range(4): A(f"v_add_f32_dpp v{64+r}, v{88+r}, v{84+r} row_ror:8 row_mask:0xf bank_mask:0xf")
    A("v_cvt_pk_bf16_f32 v68, v64, v65"); A("v_cvt_pk_bf16_f32 v69, v66, v67")
    A("ds_write_b64 v140, v[68:69]")
    A("v_mov_b32 v75, 0"); A("v_mov_b32 v79, 0"); A("v_mov_b32 v12, s17"); A("v_mov_b32 v13, s49")
    A("s_waitcnt lgkmcnt(0)"); A("s_barrier")
    for kk in range(4): A(f"ds_read_b128 v[{32+4*kk}:{35+4*kk}], v141 offset:{kk*64}")
    def opack(tau, h):
        a = 108 + 4*tau + 2*h; d = 72 + 4*h + (tau & 3)
        A(f"v_add_f32_dpp v{d}, v{a}, v{a+1} quad_perm:[0,1,2,3] row_mask:{1 << (tau >> 2):#x} bank_mask:0xf")
    def omfma(tau, kk):
        a = 108 + 4*tau; w = 144 + (tau*4 + kk)*4
        A(f"v_mfma_f32_16x16x32_bf16 v[{a}:{a+3}], v[{32+4*kk}:{35+4*kk}], v[{w}:{w+3}], {'0' if kk == 0 else f'v[{a}:{a+3}]'}")
    sh = []
    if er_at:
        L0 = g.L; g.L = []; g.wait(er[0]); chk24(48, "s17"); A("s_mov_b64 s[0:1], vcc"); sh = g.L; g.L = L0
    for kk in range(4):
        A(f"s_waitcnt lgkmcnt({3-kk})")
        for tau in range(4):
            omfma(tau, kk)
            if kk >= 1 and sh: g.L.append(sh.pop(0))
    assert not sh
    n = 0; pk = [(t_, h) for t_ in range(4) for h in range(2)]
    for kk in range(4):
        for tau in range(4, 7):
            omfma(tau, kk); n += 1
            if n >= 5 and n < 12: opack(*pk.pop(0))
    opack(*pk.pop(0)); assert not pk
    A("v_add_f32 v75, v75, v79"); A("s_mov_b32 exec_hi, 0"); A("s_nop 1")
    for tau in range(4, 7):
        opack(tau, 0); opack(tau, 1)
    for i in range(3): A(f"v_add_f32 v{72+i}, v{72+i}, v{76+i}")
    pack24(72, 12)
    A(f"buffer_store_dwordx4 v[80:83], v3, s[28:31], s65 offen {out_mod}")
    stamp("out published")
    A("s_cmp_lg_u32 s48, 0"); A("s_cbranch_scc1 L_noep" if stamps else "s_cbranch_scc1 L_end")
    if no_red: A("s_branch L_noep")
    def rround(): A(RL[0]); A(RL[1])
    if er_at: A("s_mov_b64 exec, s[0:1]")
    else:
        A("s_mov_b64 exec, -1")
        raddr(RB2); rround(); oaddr("s59")
        A("s_branch L_r_wait")
    g.lab("L_r_poll")
    rround()
    A("s_sub_u32 s66, s66, 1"); A("s_cmp_eq_u32 s66, 0"); A("s_cbranch_scc1 L_end")
    g.lab("L_r_wait")
    A(f"s_waitcnt vmcnt(0)")
    chk24(48, "s17")
    A("s_and_b64 exec, exec, vcc")
    A("s_cbranch_execnz L_r_poll")
    A("s_mov_b64 exec, -1")
    sum24(48)
    A("s_nop 1")
    A("v_permlane16_swap_b32 v48, v49")
    A("s_nop 0")
    A("v_add_f32 v48, v48, v49"); A("s_nop 1")
    A("v_add_f32_dpp v48, v48, v48 row_ror:4 row_mask:0xf bank_mask:0xf"); A("s_nop 1")
    A("v_add_f32_dpp v48, v48, v48 row_ror:8 row_mask:0xf bank_mask:0xf")
    A("s_mov_b32 exec_lo, 0x000f000f"); A("s_mov_b32 exec_hi, s61")
    A("v_cvt_pk_bf16_f32 v48, v48, v48")
    A(f"buffer_store_short v48, v17, s[44:47], s59 offen {fin_mod}")
    A("s_mov_b64 exec, 1")
    A("s_cmp_lg_u32 s2, 0"); A("s_cbranch_scc1 L_noep")
    A("buffer_store_dword v13, off, s[28:31], 0 sc1")
    g.lab("L_noep")
    if stamps:
        if endwait: A("s_waitcnt vmcnt(0)")
        stamp("end")
        A("s_waitcnt lgkmcnt(0)")
        if fb:
            for i in range(2):
                A(f"s_mul_i32 s58, s{8+i}, {round(6400 / fbn[i])}"); A("s_lshr_b32 s58, s58, 6"); A(f"s_add_u32 s{72+2*i}, s70, s58"); A(f"s_addc_u32 s{73+2*i}, s71, 0")
        if dbg:
            A("s_mov_b64 exec, -1"); A("v_mov_b32 v32, 0"); A("s_not_b32 s58, s70"); A("v_writelane_b32 v32, s58, 0")
            for k in range(g.nst): A(f"v_writelane_b32 v32, s{70+2*k}, {k+1}")
            A("s_mov_b32 s44, s16"); A("s_mov_b32 s45, s17"); A("s_mov_b32 s46, 256"); A("v_lshlrev_b32 v33, 2, v0")
            A(f"s_mov_b64 exec, {(1 << (g.nst+1)) - 1}")
            A("buffer_atomic_umax v32, v33, s[44:47], 0 offen sc1")
            A("s_branch L_end")
        A("s_mov_b64 exec, 1"); A("s_lshl_b32 s58, s2, 2"); A("s_add_u32 s58, s58, s48"); A(f"s_mul_i32 s58, s58, {g.nst*8}"); A(f"s_add_u32 s58, s58, {STAMP}")
        for k in range(g.nst):
            A(f"v_mov_b32 v32, s{70+2*k}"); A(f"v_mov_b32 v33, s{71+2*k}")
            A(f"buffer_store_dwordx2 v[32:33], off, s[28:31], s58 offset:{8*k}"); A("s_nop 1")
    g.lab("L_end"); A("s_endpgm")
    g.L += ['.section .rodata,"a"', ".p2align 6", f".amdhsa_kernel {KN}",
            "  .amdhsa_next_free_vgpr 512", "  .amdhsa_next_free_sgpr 102", "  .amdhsa_accum_offset 256",
            "  .amdhsa_group_segment_fixed_size 0", "  .amdhsa_kernarg_size 64", "  .amdhsa_user_sgpr_count 2",
            "  .amdhsa_user_sgpr_kernarg_segment_ptr 1", "  .amdhsa_system_sgpr_workgroup_id_x 1", ".end_amdhsa_kernel"]
    if hop: g.L = paginate(g.L, eoff)
    return "\n".join(g.L) + "\n", g.nst

if __name__ == "__main__":
    cfgs = {}
    exec(open(sys.argv[1]).read())
    for n, c in cfgs.items():
        t, nst = gen(**c)
        open(n + ".s", "w").write(t)
    print(" ".join(n + ".s" for n in cfgs), "nst", nst)
```

```python
import sys, re
import gen5
def pos(f, eoff=0):
    L = open(f).read().split("\n")
    isins = lambda t: t.startswith("    ") and not t.strip().startswith((";", "."))
    sz = iter(gen5.sizes(L)); off = eoff; n = 0; st = L.index(gen5.KN + ":"); e = L.index('.section .rodata,"a"')
    for i, t in enumerate(L):
        if st < i < e and isins(t):
            b = next(sz)
            if re.match(r"\s+buffer_load_dwordx4 a\[", t): n += 1
            if off // 4096 != (off + b - 1) // 4096 or (off % 4096 == 0 and off): print(f, "boundary at line", i + 1, "after issue of p =", n - 1, ":", t.strip())
            off += b
    print(f, "size", off - eoff)
for f in sys.argv[1:]: pos(f)
```

```python
import sys, math, struct
KN = "standalone__sliding_block_cached__decode_kernel"

HEADER = """; Kernarg layout for this problem (64 bytes, ptrs only, base s[0:1]):
"""

XG = 0x1000
QX = 0x400000
SX = 0x100000
OX = 0x200000
PB = 0x300000
STAMP = 0x20000000
L_WO = 0
L_WQ = 114688
L_P = L_WQ + 16384
L_ST = L_P + 4 * 4352
L_O = L_ST + 256
L_Q = L_O + 2048
L_END = L_Q + 1024

def hexf(x): return "0x%08x" % struct.unpack("<I", struct.pack("<f", x))[0]

def cost(t):
    m = t.split()[0]
    if m.startswith("v_mfma"): return 16
    if m in ("v_exp_f32", "v_rcp_f32"): return 8
    if m.startswith("ds_read_b64_tr"): return 16
    if m.startswith("ds_"): return 8
    if m == "s_nop": return 4 * (int(t.split()[1]) + 1)
    if m == "s_waitcnt" and "lgkm" in t: return 100
    if m == "s_barrier": return 60
    return 4

def sizes(L):
    import subprocess, re, os, tempfile
    d = tempfile.mkdtemp()
    open(d + "/a.s", "w").write("\n".join(L) + "\n")
    subprocess.run(["clang", "-x", "assembler", "-target", "amdgcn-amd-amdhsa", "-mcpu=gfx950", "-c", d + "/a.s", "-o", d + "/a.o"], check=True)
    o = subprocess.run(["llvm-objdump", "-d", d + "/a.o"], capture_output=True, text=True).stdout
    o = o[o.index("<" + KN + ">:"):]
    return [len(m.group(1).split()) * 4 for m in re.finditer(r"// [0-9A-F]{12}: ([0-9A-F ]+?)(?: <.*)?$", o, re.M)]

def paginate(L, eoff):
    isins = lambda t: t.startswith("    ") and not t.strip().startswith((";", "."))
    h = L.index("@HOP")
    def hopcode(n):
        c = []
        for k in range(n): c += [f"    s_cmp_eq_u32 s48, {k+1}", f"    s_cbranch_scc1 L_pg{k}"]
        return c + ["L_back:"]
    for n in (1, 2, 3):
        M = L[:h] + hopcode(n) + L[h+1:]
        T = M + [f"L_pg{k}:" for k in range(n)]
        e = M.index('.section .rodata,"a"')
        sz = iter(sizes(M[:e] + [f"L_pg{k}:" for k in range(n)] + M[e:]))
        out = []; off = eoff; k = 0; start = M.index(KN + ":"); nat = eoff >= 2048
        for i, t in enumerate(M):
            if i > start and i < e and isins(t):
                b = next(sz)
                if off + b + 4 > 4096:
                    if nat: out += ["    s_branch L_pn", ".p2align 12", "L_pn:"]; off = 0; nat = False
                    else:
                        out += [f"    s_branch L_pc{k}", ".p2align 12", f"L_pg{k}:", "    s_branch L_back", f"L_pc{k}:"]; off = 4; k += 1
                off += b
            out.append(t)
        if k == n: return out
    assert False

class G:
    def __init__(s):
        s.L = []; s.vm = 0; s.nst = 0; s.cyc = 0; s.done = -1
    def A(s, t): s.L.append("    " + t); s.cyc += cost(t)
    def lab(s, t): s.L.append(t + ":")
    def C(s, t): s.L.append("    ; " + t)
    def vmem(s, t):
        s.A(t); s.vm += 1; return s.vm - 1
    def wait(s, i):
        n = s.vm - 1 - i
        if s.done >= i: return
        assert n <= 63, n
        s.A(f"s_waitcnt vmcnt({n})"); s.done = i

def gen(D=6, D0=None, wq_at=(2, 6, 10, 14), wo0=16, wo_step=1, KP=44, VP=24, BUD=260, stamps=False, xmap=1, spin=200000,
        wo_mod="nt", wq_mod="nt", x_mod="", pst=(), DV=None, no_wo=False, no_s=False, no_q=False, crot=0, Dfun=None, few=False, Dd=None, thr=None, rank0=None, wf_at=None, dsx=0, BUDf=None, pure=0, st_mod='sc1', st_mask=None, st_cnt=True, ld_n=4, ld_mod='sc1', st_at=70, pub_mod='sc1', poll_mod='sc1', out_mod='sc1', red_mod='sc1', dbg=False, wo_late=False, dyn=None, fb=None, rotu=None, rotj=None, krot=0, xchk=True, xg_at=(12, 60), pre_at=7, oxsep=0, xg_mod='sc1 nt', tnp=1, tord=0, fmod='', no_red=False, dummy=(), dummy_mod='', tlb_o=None, tlb_v=None, tlb_vn=1, endwait=False, tlb_omod='', vx=None, vtab=None, bmax=None, rowmap=0, wo_list=None, wo_a=(), wo_b=(), q3=False, eoff=None, hop=None, ep_at=None, hopsel=None, er_at=None, er2=False, kpat=None, wo_hack=False, q4=False, fin_mod='', clean=None, cl_mod='sc1', cl_sel=3, qs=None, wqt=None, cgx=0, fm=None, smf=False, wo_first=False, atm=False, at_mod='sc0 sc1', ac_str=1024, fl_at=None, AC=0x600000, fl_s=False, sp_wq=0, sp_v=None, sp_vn=1, sp_o=None, x_at=None, sp_x=False, gs=None, FB=0xE0000):
    FO = 1024 if atm == 2 else 512; assert gs or not atm or ac_str > FO
    if gs: assert atm == 2 and fl_s; FO = 0
    if q4: kpat = 'q4'
    g = G(); A = g.A
    global L_P, L_ST, L_O, L_Q, L_END
    NQ = 5 if q3 else 4
    L_P = L_WQ + NQ * 4096; L_ST = L_P + 4 * 4352; L_O = L_ST + 256; L_Q = L_O + 2048; L_END = L_Q + 1024
    assert len(wq_at) == NQ
    if D0 is None: D0 = D
    if DV is None: DV = D
    def stamp(name):
        if stamps and not (few and name in ("q ok", "scores ok", "softmax done", "scores published", "wq landed", "q published")):
            r = 70 + 2 * g.nst
            assert r <= 100
            A(f"s_memrealtime s[{r}:{r+1}]"); g.nst += 1
    g.L.append(HEADER.rstrip())
    g.L.append(f"; @launch grid=(256,1,1) block=(256,1,1) lds={L_END}")
    g.L += ['.amdgcn_target "amdgcn-amd-amdhsa--gfx950"', ".text", f".globl {KN}"] + ([".p2align 8"] if eoff is None else [".p2align 12"] + ([f".fill {((eoff - 768) % 4096) // 4}, 4, 0xbf810000"] if (eoff - 768) % 4096 else [])) + [f".type {KN},@function", f"{KN}:"]
    A("s_load_dwordx16 s[4:19], s[0:1], 0")
    stamp("start")
    A("s_cmp_ge_u32 s2, 256"); A("s_cbranch_scc1 L_end")
    A("v_lshrrev_b32 v1, 6, v0"); A("v_and_b32 v0, 63, v0")
    if xmap == 1:
        A("s_and_b32 s52, s2, 3"); A("s_lshr_b32 s53, s2, 2")
        if dsx: A(f"s_xor_b32 s52, s52, {dsx}")
    elif xmap == 0:
        A("s_and_b32 s55, s2, 7"); A("s_lshr_b32 s58, s2, 3"); A("s_and_b32 s52, s58, 3"); A("s_lshr_b32 s54, s58, 2")
        A("s_lshl_b32 s53, s54, 3"); A("s_add_u32 s53, s53, s55")
        if dsx: A(f"s_xor_b32 s52, s52, {dsx}")
    if bmax: A(f"s_cmp_ge_u32 s54, {bmax}"); A("s_cbranch_scc1 L_end")
    A("v_readfirstlane_b32 s48, v1")
    def dohop():
        if hopsel == "ds3": A("s_cmp_lg_u32 s52, 3"); A("s_cbranch_scc1 L_back")
        if hopsel == "one": A("s_lshr_b32 s58, s2, 3"); A("s_cmp_lg_u32 s58, 3"); A("s_cbranch_scc1 L_back")
        g.L.append("@HOP")
    if hop == "early": dohop()
    A("v_and_b32 v14, 7, v0"); A("v_lshrrev_b32 v15, 3, v0")
    def rowoff(dst, src):
        if rowmap == 0: A(f"v_lshlrev_b32 v{dst}, 9, v{src}")
        elif rowmap == 1: A(f"v_lshlrev_b32 v{dst}, 11, v{src}")
        elif rowmap == 2:
            A(f"v_and_b32 v{dst}, 6, v{src}"); A(f"v_lshlrev_b32 v{dst}, 2, v{dst}"); A(f"v_and_or_b32 v{dst}, v{src}, 1, v{dst}"); A(f"v_lshlrev_b32 v{dst}, 9, v{dst}")
        elif rowmap == 3:
            A(f"v_and_b32 v{dst}, 4, v{src}"); A(f"v_lshlrev_b32 v{dst}, 2, v{dst}"); A(f"v_and_or_b32 v{dst}, v{src}, 3, v{dst}"); A(f"v_lshlrev_b32 v{dst}, 9, v{dst}")
    rowoff(1, 14); A("v_lshl_add_u32 v1, v15, 4, v1")
    if kpat == "lin": A("v_lshlrev_b32 v1, 4, v0")
    if kpat == "v": A("v_lshlrev_b32 v1, 9, v15"); A("v_lshl_add_u32 v1, v14, 4, v1")
    if kpat == "q4":
        A("v_bfe_u32 v1, v0, 2, 2"); A("v_lshlrev_b32 v1, 9, v1"); A("v_lshrrev_b32 v5, 4, v0"); A("v_lshl_add_u32 v1, v5, 6, v1"); A("v_and_b32 v5, 3, v0"); A("v_lshl_add_u32 v1, v5, 4, v1")
    koff = {None: lambda j: j*128, "v": lambda j: j*128, "lin": lambda j: j*1024, "q4": lambda j: (j & 1)*256 + (j >> 1)*2048}[kpat]
    A("s_lshl_b32 s50, s53, 22"); A(f"s_add_u32 s50, s50, {6144*512}")
    A(f"s_lshl_b32 s58, s48, {(12, 9, 10, 11)[rowmap]}"); A("s_add_u32 s50, s50, s58")
    A("s_lshl_b32 s58, s52, 7"); A("s_add_u32 s51, s50, s58")
    A("s_lshl_b32 s58, s52, 18"); A("s_add_u32 s50, s50, s58")
    A("s_mov_b32 s23, 0x20000"); A("s_mov_b32 s22, 0x10000000")
    A("s_mov_b32 s35, 0x20000"); A("s_mov_b32 s39, 0x20000"); A(f"s_mov_b32 s34, {448*4096*2}"); A(f"s_mov_b32 s38, {8*448*2}")
    assert xmap == 0
    A("v_lshlrev_b32 v12, 13, v15"); A("v_lshl_add_u32 v12, v14, 4, v12")
    A("v_mul_u32_u24 v13, 896, v14"); A("v_lshrrev_b32 v10, 4, v0"); A("v_lshl_add_u32 v13, v10, 4, v13")
    WQS = 8*8192
    if wqt:
        A("s_mul_i32 s69, s52, 320"); A("s_lshl_b32 s68, s69, 12")
        if wqt == "x1":
            A(f"s_mul_i32 s58, s48, {40*8192}"); A("s_add_u32 s68, s68, s58")
            A("s_lshl_b32 s58, s55, 3"); A("s_add_u32 s58, s58, s54"); A("s_xor_b32 s58, s58, 1"); A("s_lshl_b32 s58, s58, 7"); A("s_add_u32 s68, s68, s58")
        elif wqt == "s32":
            A("v_lshlrev_b32 v12, 15, v15"); A("v_lshl_add_u32 v12, v14, 4, v12"); WQS = 32*8192
            A(f"s_mul_i32 s58, s48, {8192}"); A("s_add_u32 s68, s68, s58")
            A("s_lshl_b32 s58, s55, 3"); A("s_add_u32 s58, s58, s54"); (A(f"s_xor_b32 s58, s58, {cgx}") if cgx else None); A("s_lshl_b32 s58, s58, 7"); A("s_add_u32 s68, s68, s58")
        elif wqt == "s20":
            A(f"v_mul_u32_u24 v12, {20*8192}, v15"); A("v_lshl_add_u32 v12, v14, 4, v12"); WQS = 8192
            A(f"s_mul_i32 s58, s48, {5*8192}"); A("s_add_u32 s68, s68, s58")
            A("s_lshl_b32 s58, s55, 3"); A("s_add_u32 s58, s58, s54"); (A(f"s_xor_b32 s58, s58, {cgx}") if cgx else None); A("s_lshl_b32 s58, s58, 7"); A("s_add_u32 s68, s68, s58")
        elif wqt == "w256":
            A("v_lshlrev_b32 v12, 13, v10"); A("v_and_b32 v5, 15, v0"); A("v_lshl_add_u32 v12, v5, 4, v12"); WQS = 4*8192
            A(f"s_mul_i32 s58, s48, {20*8192}"); A("s_add_u32 s68, s68, s58")
            A("s_and_b32 s58, s54, 1"); A(f"s_mul_i32 s58, s58, {80*8192}"); A("s_add_u32 s68, s68, s58")
            A("s_lshl_b32 s58, s55, 3"); A("s_add_u32 s58, s58, s54"); A("s_andn2_b32 s58, s58, 1"); A("s_lshl_b32 s58, s58, 7"); A("s_add_u32 s68, s68, s58")
        elif wqt == "rot":
            A("v_add_u32 v5, s54, v15"); A("v_and_b32 v5, 7, v5"); A("v_lshl_add_u32 v12, v5, 7, v12")
            A(f"s_mul_i32 s58, s48, {40*8192}"); A("s_add_u32 s68, s68, s58")
            A("s_lshl_b32 s58, s55, 10"); A("s_add_u32 s68, s68, s58")
        A("s_cmp_eq_u32 s52, 3"); A("s_cselect_b32 s69, 0x10000, s69")
        A("s_mul_i32 s57, s48, 5120"); A(f"s_add_u32 s57, s57, {L_WQ}")
    elif qs:
        assert q3 and sum(qs) == 56 and qs[2] == 20 and not (rotu or vtab)
        if qs[0] == qs[1]: A(f"s_mul_i32 s69, s52, {qs[0]*16}")
        else: A(f"s_mul_i32 s69, s52, {qs[0]*16}"); A("s_cmp_eq_u32 s52, 2"); A(f"s_cselect_b32 s69, {36*16}, s69")
        A("s_cmp_eq_u32 s52, 3"); A("s_cselect_b32 s69, 0x10000, s69")
        A("s_lshl_b32 s68, s69, 12"); A(f"s_mul_i32 s58, s48, {40*8192}"); A("s_add_u32 s68, s68, s58")
        A("s_lshl_b32 s58, s55, 3"); A("s_add_u32 s58, s58, s54"); (A(f"s_xor_b32 s58, s58, {cgx}") if cgx else None); A("s_lshl_b32 s58, s58, 7"); A("s_add_u32 s68, s68, s58")
        A("s_lshl_b32 s99, s48, 2"); A("s_sub_u32 s99, s99, s52")
        A("s_mul_i32 s57, s48, 5120"); A(f"s_add_u32 s57, s57, {L_WQ}")
    elif q3:
        A("s_mul_i32 s69, s52, 320")
        A("s_lshl_b32 s68, s69, 12"); A(f"s_mul_i32 s58, s48, {40*8192}"); A("s_add_u32 s68, s68, s58")
        A("s_lshl_b32 s58, s55, 3"); A("s_add_u32 s58, s58, s54"); (A(f"s_xor_b32 s58, s58, {cgx}") if cgx else None); A("s_lshl_b32 s58, s58, 7"); A("s_add_u32 s68, s68, s58")
        A("s_cmp_eq_u32 s52, 3"); A("s_cselect_b32 s69, 0x10000, s69")
        A("s_mul_i32 s57, s48, 5120"); A(f"s_add_u32 s57, s57, {L_WQ}")
    else:
        A("s_lshl_b32 s69, s52, 8"); A("s_cmp_eq_u32 s52, 3"); A("s_cselect_b32 s69, 704, s69")
        A("s_lshl_b32 s68, s69, 12"); A("s_lshl_b32 s58, s48, 18"); A("s_add_u32 s68, s68, s58")
        A("s_lshl_b32 s58, s55, 3"); A("s_add_u32 s58, s58, s54"); (A(f"s_xor_b32 s58, s58, {cgx}") if cgx else None); A("s_lshl_b32 s58, s58, 7"); A("s_add_u32 s68, s68, s58")
        A("s_lshl_b32 s58, s52, 2"); A("s_add_u32 s58, s58, s48"); A("s_cmp_eq_u32 s58, 11"); A("s_cselect_b32 s68, 0x400000, s68")
        A("s_lshl_b32 s57, s48, 12"); A(f"s_add_u32 s57, s57, {L_WQ}")
    if krot:
        A(f"s_mul_i32 s100, s52, {krot << 14}"); A(f"s_and_b32 s100, s100, {16*16384-1}"); A("s_mov_b32 s98, s50"); A("s_add_u32 s50, s98, s100")
    if rotu:
        for t_ in rotu: A(t_)
        A("s_and_b32 s100, s100, 15"); A("s_and_b32 s101, s101, 63"); A("s_lshl_b32 s100, s100, 14"); A("s_lshl_b32 s101, s101, 14")
        A("s_mov_b32 s98, s50"); A("s_mov_b32 s99, s51"); A("s_add_u32 s50, s98, s100"); A("s_add_u32 s51, s99, s101")
    if rotj:
        for t_ in rotj: A(t_)
        for j in range(4):
            A(f"s_add_u32 s58, s97, {j}"); A("s_and_b32 s58, s58, 3"); A("s_lshl_b32 s58, s58, 7"); A(f"v_add_u32 v{116+j}, s58, v1")
    A("s_waitcnt lgkmcnt(0)")
    A("s_mov_b32 s20, s6"); A("s_mov_b32 s21, s7")
    ids = {}
    def issue(p):
        if p < 64:
            u, j = divmod(p, 4)
            if rotj: ids[p] = g.vmem(f"buffer_load_dwordx4 a[{4*p}:{4*p+3}], v{116+j}, s[20:23], s50 offen nt")
            else: ids[p] = g.vmem(f"buffer_load_dwordx4 a[{4*p}:{4*p+3}], v1, s[20:23], s50 offen offset:{koff(j)} nt")
            if j == 3 and p != 63:
                if rotu or krot: A("s_add_u32 s100, s100, 16384"); A(f"s_and_b32 s100, s100, {16*16384-1}"); A("s_add_u32 s50, s98, s100")
                else: A("s_add_u32 s50, s50, 16384")
        else:
            t = p - 64
            if vx == "t":
                A(f"s_xor_b32 s58, s51, {(t & 3) << 7}")
                ids[p] = g.vmem(f"buffer_load_dwordx4 a[{4*t}:{4*t+3}], v2, s[24:27], s58 offen nt")
            elif vx == "t4":
                A(f"s_xor_b32 s58, s51, {((t >> 2) & 3) << 7}")
                ids[p] = g.vmem(f"buffer_load_dwordx4 a[{4*t}:{4*t+3}], v2, s[24:27], s58 offen nt")
            else: ids[p] = g.vmem(f"buffer_load_dwordx4 a[{4*t}:{4*t+3}], v2, s[24:27], s51 offen nt")
            if t != 63:
                if rotu or vtab: A("s_add_u32 s101, s101, 16384"); A(f"s_and_b32 s101, s101, {64*16384-1}"); A("s_add_u32 s51, s99, s101")
                else:
                    vo = lambda t: ((t & 48) + (((t & 15) + (t >> 4) * krot) & 15)) * 16384
                    dl = vo(t + 1) - vo(t)
                    A(f"s_add_u32 s51, s51, {dl}" if dl > 0 else f"s_sub_u32 s51, s51, {-dl}")
    wq_last = [None]; m0c = [None]
    def wq_issue(i):
        A("s_mov_b32 m0, s57"); m0c[0] = None
        if qs:
            c = [d_ for d_ in range(2) if qs[d_] - 15 == i]
            if len(c) == 2: A("s_cmp_ge_i32 s99, 11"); A("s_cselect_b32 s68, 0x10000000, s68")
            elif c: A(f"s_cmp_eq_u32 s99, {12 - c[0]}"); A("s_cselect_b32 s68, 0x10000000, s68")
            else: A("s_nop 0")
        elif i == NQ - 1:
            A("s_cmp_ge_u32 s52, 2"); A("s_cselect_b32 s69, 0x10000, s69")
        else: A("s_nop 0")
        g.vmem(f"buffer_load_dwordx4 v12, s[32:35], s68 offen {wq_mod} lds")
        wq_last[0] = g.vm - 1
        for i2 in range(NQ):
            if (x_at[i2] if x_at else i2) == i:
                wq_last[0] = g.vmem(f"buffer_load_dwordx4 v[{144+4*i2}:{147+4*i2}], v13, s[36:39], s69 offen offset:{i2*64} {x_mod}")
        if i < NQ - 1: A(f"s_add_u32 s68, s68, {WQS}"); A("s_add_u32 s57, s57, 1024")
    issue(0)
    A("s_load_dword s49, s[18:19], 0")
    A("s_mov_b32 s32, s10"); A("s_mov_b32 s33, s11"); A("s_mov_b32 s36, s4"); A("s_mov_b32 s37, s5")
    for p in range(1, D0):
        issue(p)
        if p in wq_at and not no_q: wq_issue(wq_at.index(p))
    stamp("issued")
    if hop == "late": dohop()
    def setup():
        if xmap == 1: A("s_lshr_b32 s54, s53, 3"); A("s_and_b32 s55, s53, 7")
        rowoff(2, 15); A("v_lshl_add_u32 v2, v14, 4, v2")
        if vx == "w": A("s_lshl_b32 s58, s48, 7"); A("s_xor_b32 s51, s51, s58")
        if vx == "row":
            A("v_and_b32 v3, 3, v15"); A("v_xor_b32 v3, s52, v3"); A("v_lshl_add_u32 v2, v3, 7, v2"); A("s_andn2_b32 s51, s51, 0x180")
        if isinstance(vx, int):
            A("s_andn2_b32 s51, s51, 0x300180"); A("s_lshl_b32 s58, s52, 20"); A("s_add_u32 s51, s51, s58"); A(f"s_add_u32 s51, s51, {vx << 7}")
        if vtab:
            A("s_andn2_b32 s99, s51, 0x180")
            for i, (bo, ro) in enumerate(vtab):
                A(f"s_cmp_eq_u32 s52, {i}"); A(f"s_cselect_b32 s58, {bo & 0xffffffff}, 0"); A("s_add_u32 s99, s99, s58")
                if i == 0: A("s_mov_b32 s101, 0")
                A(f"s_cmp_eq_u32 s52, {i}"); A(f"s_cselect_b32 s58, {(ro & 63) << 14}, 0"); A("s_add_u32 s101, s101, s58")
            A("s_add_u32 s51, s99, s101")
        A("v_lshlrev_b32 v3, 4, v0")
        A("v_lshlrev_b32 v4, 3, v0")
        for r in (27, 31, 43, 47): A(f"s_mov_b32 s{r}, 0x20000")
        A("s_mov_b32 s26, 0x10000000"); A("s_mov_b32 s30, 0x40000000")
        A(f"s_mov_b32 s42, {448*4096*2}"); A(f"s_mov_b32 s46, {8*448*2}")
        A("s_mov_b32 s24, s8"); A("s_mov_b32 s25, s9"); A("s_mov_b32 s28, s18"); A("s_mov_b32 s29, s19")
        A("s_mov_b32 s40, s12"); A("s_mov_b32 s41, s13"); A("s_mov_b32 s44, s14"); A("s_mov_b32 s45, s15")
        A("s_lshl_b32 s56, s55, 1"); A("s_lshr_b32 s58, s48, 1"); A("s_add_u32 s56, s56, s58"); A("s_lshl_b32 s56, s56, 2"); A("s_add_u32 s56, s56, s52")
        A(f"s_mul_i32 s56, s56, {64*896}"); A("s_and_b32 s58, s48, 1"); A("s_mul_i32 s58, s58, 28672"); A("s_add_u32 s56, s56, s58")
        A("s_mul_i32 s3, s48, 28672")
        A("v_and_b32 v5, 1, v0")
        A("v_mov_b32 v6, 0xffff"); A("v_lshlrev_b32 v7, 4, v5"); A("v_lshlrev_b32 v11, v7, v6")
        A("v_lshrrev_b32 v5, 1, v14")
        for j in range(4):
            A(f"v_cmp_eq_u32 vcc, {j}, v5"); A("s_nop 1"); A(f"v_cndmask_b32 v{6+j}, 0, v11, vcc")
        A(f"s_mul_i32 s58, s48, 4352"); A(f"s_add_u32 s58, s58, {L_P}")
        if q4:
            A("v_and_b32 v5, 1, v0"); A("v_lshlrev_b32 v5, 2, v5"); A("v_and_or_b32 v5, v0, 2, v5"); A("v_lshrrev_b32 v11, 5, v0"); A("v_or_b32 v5, v5, v11"); A("v_mul_u32_u24 v11, 544, v5")
            A("v_and_b32 v5, 12, v0"); A("v_lshl_add_u32 v11, v5, 1, v11"); A("v_and_b32 v5, 1, v10"); A("v_lshl_add_u32 v11, v5, 2, v11"); A("v_add_u32 v136, s58, v11")
        else:
            A("v_mul_u32_u24 v11, 544, v5"); A("v_lshl_add_u32 v11, v15, 3, v11"); A("v_and_b32 v5, 1, v0"); A("v_lshl_add_u32 v11, v5, 2, v11"); A("v_add_u32 v136, s58, v11")
        A("v_bfe_u32 v5, v0, 3, 1"); A("v_lshl_add_u32 v5, v5, 2, v10"); A("v_mul_u32_u24 v11, 544, v5"); A("v_add_u32 v137, s58, v11")
        A("v_bfe_u32 v5, v0, 2, 2"); A("v_lshl_add_u32 v5, v10, 3, v5"); A("v_mul_u32_u24 v5, 896, v5"); A("v_and_b32 v11, 3, v0"); A("v_lshl_add_u32 v5, v11, 3, v5")
        A("s_mul_i32 s58, s48, 224"); A("v_add_u32 v138, s58, v5"); A(f"v_add_u32 v139, {64*896}, v138")
        if smf:
            A("v_lshrrev_b32 v5, 5, v0"); A("v_mul_u32_u24 v5, 272, v5"); A("v_and_b32 v11, 6, v0"); A("v_lshl_add_u32 v5, v11, 5, v5")
            A("v_and_b32 v11, 1, v0"); A("v_lshl_add_u32 v5, v11, 3, v5"); A("v_and_b32 v11, 1, v10"); A("v_lshl_add_u32 v5, v11, 2, v5")
            A("v_and_b32 v11, 8, v0"); A("v_mul_u32_u24 v141, 148, v11"); A("s_lshl_b32 s58, s48, 4"); A(f"s_add_u32 s58, s58, {L_O}"); A("v_add3_u32 v140, s58, v5, v141")
            A("v_mul_u32_u24 v5, 72, v11"); A("v_lshl_add_u32 v5, v10, 6, v5"); A("v_and_b32 v11, 3, v0"); A("v_lshl_add_u32 v5, v11, 4, v5"); A(f"v_add_u32 v141, {L_O}, v5")
        else:
            A("v_lshrrev_b32 v5, 5, v0"); A("v_lshlrev_b32 v5, 7, v5"); A("v_lshl_add_u32 v5, v14, 4, v5"); A("v_bfe_u32 v11, v0, 4, 1"); A("v_lshl_add_u32 v5, v11, 3, v5")
            A("v_bfe_u32 v11, v0, 3, 1"); A("v_lshl_add_u32 v5, v11, 10, v5"); A("s_lshl_b32 s58, s48, 8"); A(f"s_add_u32 s58, s58, {L_O}"); A("v_add_u32 v140, s58, v5")
            A("v_and_b32 v5, 3, v0"); A("v_lshlrev_b32 v5, 8, v5"); A("v_lshl_add_u32 v5, v10, 4, v5"); A(f"v_add_u32 v141, {L_O}, v5")
        if q4:
            A("v_and_b32 v11, 1, v0"); A("v_lshlrev_b32 v11, 7, v11")
            A("s_lshl_b32 s58, s48, 5"); A(f"s_add_u32 s58, s58, {L_ST}"); A("v_lshl_add_u32 v5, v10, 3, v11"); A("v_add_u32 v142, s58, v5")
            A("v_and_b32 v5, 14, v0"); A("v_lshl_add_u32 v5, v5, 3, v11"); A(f"v_add_u32 v143, {L_ST}, v5")
        else:
            A("s_lshl_b32 s58, s48, 6"); A(f"s_add_u32 s58, s58, {L_ST}"); A("v_lshlrev_b32 v5, 4, v10"); A("v_add_u32 v142, s58, v5")
            A("v_and_b32 v5, 15, v0"); A("v_lshlrev_b32 v5, 4, v5"); A(f"v_add_u32 v143, {L_ST}, v5")
        A(f"s_mov_b32 s67, {hexf(math.log2(math.e)/16)}")
        A("v_bfe_u32 v5, v0, 2, 2"); A("v_lshl_add_u32 v5, v10, 3, v5"); A("v_lshlrev_b32 v5, 7, v5"); A("v_and_b32 v11, 3, v0"); A("v_lshl_add_u32 v5, v11, 3, v5")
        A("s_lshl_b32 s58, s48, 5"); A(f"s_add_u32 s58, s58, {L_WQ}"); A("v_add_u32 v108, s58, v5")
        A("v_lshlrev_b32 v111, 13, v14"); A("v_lshl_add_u32 v111, v10, 4, v111")
        A("s_lshl_b32 s58, s48, 8"); A(f"s_add_u32 s58, s58, {L_Q}"); A("v_and_b32 v5, 31, v0"); A("v_lshl_add_u32 v112, v5, 3, s58"); A("v_lshrrev_b32 v5, 5, v0"); A("v_lshl_add_u32 v112, v5, 2, v112")
        if q4:
            A("v_and_b32 v5, 1, v0"); A("v_lshlrev_b32 v5, 9, v5"); A("v_lshl_add_u32 v5, v10, 6, v5"); A("v_and_b32 v11, 12, v0"); A("v_lshl_add_u32 v5, v11, 2, v5"); A(f"v_add_u32 v113, {L_Q}, v5")
        else:
            A("v_bfe_u32 v5, v0, 1, 1"); A("v_lshlrev_b32 v5, 9, v5"); A("v_lshl_add_u32 v5, v10, 5, v5"); A("v_and_b32 v11, 1, v0"); A("v_lshl_add_u32 v5, v11, 4, v5"); A(f"v_add_u32 v113, {L_Q}, v5")
        A("s_lshl_b32 s60, s55, 16"); A(f"s_add_u32 s60, s60, {QX}")
        CG = "s66" if cgx else "s54"
        if cgx: A(f"s_xor_b32 s66, s54, {cgx}")
        A(f"s_lshr_b32 s58, {CG}, 1"); A("s_lshl_b32 s58, s58, 2"); A("s_add_u32 s58, s58, s52"); A("s_lshl_b32 s58, s58, 1"); A(f"s_and_b32 s66, {CG}, 1"); A("s_add_u32 s58, s58, s66")
        A("s_lshl_b32 s58, s58, 2"); A("s_add_u32 s58, s58, s48"); A("s_lshl_b32 s58, s58, 6"); A("s_add_u32 s59, s60, s58")
        A("s_lshl_b32 s66, s54, 13"); A("s_add_u32 s60, s60, s66")
        if not atm: A("s_lshl_b32 s58, s52, 2"); A("s_add_u32 s58, s58, s48"); A("s_lshl_b32 s58, s58, 9"); A("s_add_u32 s65, s60, s58")
        A("s_lshl_b32 s58, s48, 11"); A("s_add_u32 s60, s60, s58")
        A("s_lshl_b32 s61, s53, 2"); A("s_add_u32 s61, s61, s48")
        A("s_lshl_b32 s61, s61, 11"); A(f"s_add_u32 s61, s61, {SX}")
        A("s_lshl_b32 s62, s52, 9"); A("s_add_u32 s62, s62, s61")
        A("s_lshl_b32 s63, s55, 2"); A("s_add_u32 s63, s63, s52")
        if atm:
            assert smf and not wo_a and not fb and not dyn and not thr
            A("s_lshl_b32 s58, s54, 2"); A("s_add_u32 s65, s58, s48"); A(f"s_mul_i32 s65, s65, {ac_str}"); A(f"s_add_u32 s65, s65, {AC}")
            A("s_add_u32 s58, s58, 3"); A("s_cmp_eq_u32 s58, s63"); A("s_cselect_b32 s64, s65, 0x7f000000")
            A("v_mov_b64 v[40:41], 0"); A("v_mov_b64 v[42:43], 0")
            if gs:
                A("s_add_u32 s96, s58, s48"); A("s_lshl_b32 s96, s96, 7"); A(f"s_add_u32 s96, s96, {FB}")
                A("s_cmp_eq_u32 s58, s63"); A("s_cselect_b32 s97, s96, 0x7f000000")
                if gs == 128:
                    A("v_and_b32 v45, 60, v0"); A("v_lshl_add_u32 v45, v45, 4, v3"); A("v_lshl_add_u32 v46, v15, 6, v4")
                elif gs != 64:
                    A("v_lshrrev_b32 v45, 2, v0"); A(f"v_mul_u32_u24 v45, {gs}, v45"); A("v_and_b32 v46, 3, v0"); A("v_lshl_add_u32 v45, v46, 4, v45")
                    A(f"v_mul_u32_u24 v46, {gs}, v15"); A("v_lshl_add_u32 v46, v14, 3, v46")
        else:
            A("s_lshl_b32 s64, s63, 6"); A("s_add_u32 s64, s64, s66"); A(f"s_add_u32 s64, s64, {QX}")
            if oxsep: A(f"s_add_u32 s64, s64, {oxsep}"); A(f"s_add_u32 s65, s65, {oxsep}")
        A("s_mov_b32 s12, 0x07060501"); A("s_mov_b32 s13, 0x07060100"); A("s_mov_b32 s14, 0x07060302"); A("s_mov_b32 s15, 0x0706000c"); A("s_mov_b32 s16, 0x05040100")
        A("v_mov_b32 v116, -1"); A("v_mov_b32 v117, -1")
        if wo_a:
            assert not fb
            A("s_cmp_eq_u32 s52, 3"); A("s_cselect_b64 s[4:5], -1, 0"); A("s_not_b64 s[6:7], s[4:5]")
        if isinstance(rank0, int):
            A("s_and_b32 s0, s2, 7"); A(f"s_bitcmp1_b32 {rank0:#x}, s0"); A("s_cselect_b32 s0, 255, 0")
        if dyn:
            A("s_and_b32 s1, s2, 7"); A(f"s_bitcmp1_b32 {dyn['himask']:#x}, s1"); A("s_cselect_b32 s1, 1, 0")
            A("s_cmp_eq_u32 s52, 3"); A("s_cselect_b32 s101, 1, 0")
        if rank0 == "dsodd":
            A("s_bitcmp1_b32 s52, 0"); A("s_cselect_b32 s0, 255, 0")
        if rank0 == "dshi":
            A("s_bitcmp1_b32 s52, 1"); A("s_cselect_b32 s0, 255, 0")
        if rank0 == "lo3":
            A("s_cmp_lt_u32 s2, 24"); A("s_cselect_b32 s0, 255, 0")
        if rank0 == "cls3":
            A("s_lshr_b32 s0, s2, 5"); A("s_cmp_eq_u32 s0, 3"); A("s_cselect_b32 s0, 255, 0")
    XS = 's97' if clean else 's58'
    assert not (clean and (er_at or rotj))
    def setup2():
        A("s_waitcnt lgkmcnt(0)")
        if fb:
            A("s_mov_b32 s18, 256"); A("s_mov_b32 s19, 0x20000")
            A("s_getreg_b32 s1, hwreg(HW_REG_XCC_ID, 0, 3)"); A(f"s_lshl_b32 s1, s1, 7"); A(f"s_add_u32 s1, s1, {PB}")
            A("s_lshr_b32 s58, s2, 3"); A("s_add_u32 s4, s58, s1")
            A("s_cmp_eq_u32 s48, 0"); A("s_cselect_b32 s4, s4, 0x7f000000")
            A("s_and_b32 s5, s58, 3"); A("s_lshl_b32 s66, s48, 2"); A("s_add_u32 s5, s5, s66")
            A("s_lshr_b32 s7, s58, 2"); A("s_add_u32 s7, s7, s1"); A("s_add_u32 s7, s7, 32")
            A("v_and_b32 v123, 39, v0"); A("v_cmp_gt_u32 vcc, 32, v0"); A("s_nop 1"); A("v_cndmask_b32 v123, v123, v0, vcc")
            A(f"s_mov_b32 s0, {fb['D0']}"); A("s_mov_b32 s8, 0"); A("s_mov_b32 s9, 0")
            if fb.get("gp"):
                A("s_cmp_eq_u32 s5, 15"); A("s_cselect_b32 s58, s7, 0x7f000000"); A("v_mov_b32 v122, 32"); A("s_mov_b64 exec, 1")
                g.vmem("buffer_store_byte v122, off, s[28:31], s58"); A("s_mov_b64 exec, -1")
            if fb.get("ds3"): A("s_cmp_eq_u32 s52, 3"); A("s_cselect_b32 s101, 1, 0")
        A("s_mul_i32 s49, s49, 0x0019660D"); A("s_add_u32 s49, s49, 0x3C6EF35F")
        A("v_mov_b32 v114, s49"); A("s_xor_b32 s17, s49, 0x00020002")
        if xchk:
            A("s_getreg_b32 s10, hwreg(HW_REG_XCC_ID, 0, 4)"); A("s_lshl_b32 s10, s10, 1"); A("s_add_u32 s10, s10, s49")
            A("s_lshl_b32 s11, s55, 7"); A(f"s_add_u32 s11, s11, {XG}")
            A("s_lshr_b32 s58, s2, 3"); A("s_lshl_b32 s58, s58, 2"); A("s_add_u32 s58, s58, s11"); A("s_cmp_eq_u32 s48, 0"); A(f"s_cselect_b32 {XS}, s58, 0x7f000000")
            A("v_mov_b32 v110, s10"); A("v_and_b32 v109, 31, v0"); A("v_lshlrev_b32 v109, 2, v109"); A("s_mov_b64 exec, 1")
            g.vmem(f"buffer_store_dword v110, off, s[28:31], {XS} {fm.get('x', '') if fm else ''}"); A("s_mov_b64 exec, -1")
    setup()
    if ep_at is None: setup2()
    for i in range(sp_wq): A(f"s_buffer_load_dword s1, s[32:35], s68 offset:{i*65536}")
    if sp_x:
        A("s_mul_i32 s58, s48, 1792"); A("s_add_u32 s58, s58, s69")
        for i in range(2):
            for j in (128, 256): A(f"s_buffer_load_dword s1, s[36:39], s58 offset:{i*896 + j}")

    wo_at = wo_list or [wo0 + int(wo_step*i) for i in range(28)]
    assert len(wo_a) == len(wo_b) and len(wo_at) + len(wo_a) == 28
    wo_n = [0]; wo_last = [None]; wo_c = {None: len(wo_a), "a": 0, "b": 0} if wo_first else {None: 0, "a": len(wo_at), "b": len(wo_at)}
    def wo_issue(cls=None, p=None):
        q = wo_c[cls]; wo_c[cls] += 1
        if cls != "a": wo_n[0] += 1
        if wo_a:
            if m0c[0] != q // 4:
                A(f"s_add_u32 m0, s3, {(q // 4) * 4096}"); A(f"s_add_u32 s96, s56, {(q // 4) * 4096}"); m0c[0] = q // 4
            if cls: A(f"s_mov_b64 exec, s[{'4:5' if cls == 'a' else '6:7'}]")
            wo_last[0] = g.vmem(f"buffer_load_dwordx4 v3, s[40:43], s96 offen offset:{(q%4)*1024} {wo_mod} lds")
            if cls: A("s_mov_b64 exec, -1")
            return
        if q % 4 == 0 and q: A("s_add_u32 s56, s56, 4096"); A("s_add_u32 s3, s3, 4096")
        if q % 4 == 0 or m0c[0] is None:
            A("s_mov_b32 m0, s3"); A("s_nop 0"); m0c[0] = 0
        if not no_wo: wo_last[0] = g.vmem(f"buffer_load_dwordx4 v3, s[40:43], s56 offen offset:{(q%4)*1024} {wo_mod} lds")

    def qpoll():
        last = None
        for k in range(2):
            r = 32 + k*4
            last = g.vmem(f"buffer_load_dwordx4 v[{r}:{r+3}], v3, s[28:31], s60 offen offset:{k*1024} {poll_mod}")
        return last
    xg = []; pre = []; PRE = "buffer_store_dwordx2 v[116:117], v4, s[28:31], s62"
    def publish(name, ins, mask=None, slow=None):
        def st(mod):
            if mask: A(f"s_mov_b32 exec_lo, {mask:#x}"); A(f"s_mov_b32 exec_hi, {mask:#x}")
            return f"{ins} offen {mod}"
        if not xchk:
            i = g.vmem(st(pub_mod))
        else:
            g.wait(xg[-1])
            A("v_cmp_ne_u32 vcc, s10, v115"); A(f"s_cbranch_vccz L_{name}_fast")
            if slow: A(f"{slow} offen {pub_mod}"); A("s_waitcnt vmcnt(0)")
            A(st(pub_mod)); A(f"s_branch L_{name}_pub")
            g.lab(f"L_{name}_fast")
            i = g.vmem(st(fm[name] if fm else fmod))
            g.lab(f"L_{name}_pub")
        if mask: A("s_mov_b64 exec, -1")
        return i
    def pack24(r, tag):
        A(f"v_perm_b32 v80, v{r}, v{r+1}, s12"); A(f"v_perm_b32 v81, v{r+1}, v{tag}, s13")
        A(f"v_perm_b32 v82, v{r+2}, v{r+3}, s12"); A(f"v_perm_b32 v83, v{r+3}, v{tag}, s14")
    def chk24(r, tag):
        A(f"v_perm_b32 v5, v{r+3}, v{r+1}, s16"); A(f"v_perm_b32 v11, v{r+7}, v{r+5}, s16")
        A(f"v_xor_b32 v5, {tag}, v5"); A(f"v_xor_b32 v11, {tag}, v11"); A("v_or_b32 v5, v5, v11")
        A("v_cmp_ne_u32 vcc, 0, v5")
    def sum24(r):
        for k in range(4): A(f"v_perm_b32 v{r+1+2*k}, v{r+1+2*k}, v{r+2*k}, s15")
        for k in range(4): A(f"v_add_f32 v{r+k}, v{r+k}, v{r+4+k}")
        A("s_nop 0")
        A(f"v_permlane32_swap_b32 v{r}, v{r+2}"); A(f"v_permlane32_swap_b32 v{r+1}, v{r+3}")
        A("s_nop 0")
        A(f"v_add_f32 v{r}, v{r}, v{r+2}"); A(f"v_add_f32 v{r+1}, v{r+1}, v{r+3}")
    fl = []
    def fpoll(): fl.append(g.vmem(f"buffer_load_dword v15, off, s[28:31], {'s96' if gs else 's65'} offset:{FO} {poll_mod}"))
    def t_flag():
        g.wait(fl[0])
        check("f", lambda: A("v_cmp_ne_u32 vcc, s49, v15"), fpoll)
        yield
    def spoll():
        last = None
        if atm and fl_at is None: fpoll()
        for sp in range(4):
            r = 32 + sp*2
            last = g.vmem(f"buffer_load_dwordx2 v[{r}:{r+1}], v4, s[28:31], s61 offen offset:{sp*512} {poll_mod}")
        return last
    def schk():
        A("v_max3_u32 v5, v32, v33, v34"); A("v_max3_u32 v11, v35, v36, v37"); A("v_max3_u32 v5, v5, v38, v39"); A("v_max_u32 v5, v5, v11")
        if atm and fl_at is None: A("v_cmp_ne_u32 s[0:1], s49, v15")
        A("v_cmp_eq_u32 vcc, -1, v5")
        if atm and fl_at is None: A("s_or_b64 vcc, vcc, s[0:1]")
    def check(name, chk, repoll):
        A(f"s_mov_b32 s66, {spin}")
        g.lab(f"L_{name}_chk")
        chk()
        A(f"s_cbranch_vccz L_{name}_ok")
        sv = g.vm; repoll(); g.vm = sv
        A("s_sub_u32 s66, s66, 1"); A("s_cmp_eq_u32 s66, 0"); A("s_cbranch_scc1 L_end")
        A("s_waitcnt vmcnt(0)")
        A(f"s_branch L_{name}_chk")
        g.lab(f"L_{name}_ok")

    st = dict(q_ok=False, s_ok=False, landed=-1, qk=0, pv=0)
    def t_qproj():
        g.wait(wq_last[0])
        stamp("wq landed")
        A("s_barrier")
        for i in range(NQ):
            for hh in range(2):
                r = 164 + 4*i + 2*hh
                A(f"ds_read_b64_tr_b16 v[{r}:{r+1}], v108 offset:{i*4096 + hh*512}")
        yield
        A("s_waitcnt lgkmcnt(0)")
        for i in range(NQ):
            A(f"v_mfma_f32_16x16x32_bf16 v[64:67], v[{164+4*i}:{167+4*i}], v[{144+4*i}:{147+4*i}], {'0' if i == 0 else 'v[64:67]'}")
        yield
        A("s_nop 7")
        pack24(64, 114)
        g.wait(pre[-1])
        if atm:
            A("s_mov_b64 exec, 1"); g.vmem(f"buffer_store_dword v114, off, s[28:31], {'s97' if gs else 's64'} offset:{FO} sc1"); A("s_mov_b64 exec, -1")
        publish("q", "buffer_store_dwordx4 v[80:83], v111, s[28:31], s59", 0x00ff00ff, PRE)
        stamp("q published")
        yield
        if q4:
            for r in range(16, 32): A(f"v_mov_b32 v{r}, 0")
            yield
    def t_qshare(qp):
        g.wait(qp)
        if not no_q: check("q", lambda: chk24(32, "s49"), qpoll)
        sum24(32)
        A("v_cvt_pk_bf16_f32 v32, v32, v33")
        A("ds_write_b32 v112, v32")
        if not no_wo and not wo_late: g.wait(wo_last[0])
        A("s_waitcnt lgkmcnt(0)"); A("s_barrier")
        if q4:
            for j in range(4):
                if j % 2 == 0:
                    mk = 0x33333333 << j
                    A(f"s_mov_b32 exec_lo, {mk:#x}"); A(f"s_mov_b32 exec_hi, {mk:#x}")
                A(f"ds_read_b128 v[{16+4*j}:{19+4*j}], v113 offset:{(j&1)*256}")
            A("s_mov_b64 exec, -1")
        else:
            for j in range(4): A(f"ds_read_b128 v[{16+4*j}:{19+4*j}], v113 offset:{j*128}")
        yield
        A("s_waitcnt lgkmcnt(0)")
        stamp("q ok")
        st["q_ok"] = True
        yield
    def t_wofrag():
        n = 0
        for tau in range(8 if atm else 7):
            for kk in range(4):
                for hh in range(2):
                    r = (144 + tau*16 if tau < 7 else 16) + kk*4 + hh*2
                    base = 138 + (kk >> 1)
                    co = (tau >> 1)*56 + (tau & 1)*24 if atm else tau*32
                    A(f"ds_read_b64_tr_b16 v[{r}:{r+1}], v{base} offset:{((kk&1)*32 + hh*4)*896 + co}")
                    n += 1
                    if n % 4 == 0: yield
    def qk_packgrp(u):
        a = 64 + 4*(u % 3); z = u >> 3; gg = (u >> 1) & 3; c1 = u & 1
        if q4:
            t = u & 3; d = 76 + (u >> 2)
            for k in range(1, 4):
                b = (t + k) & 3
                A(f"v_add_f32_dpp v{d}, v{a+b}, v{a+t if k == 1 else d} row_ror:{4*((t-b)&3)} row_mask:0xf bank_mask:{1<<t:#x}")
            return
        for h in range(2):
            t = 76 + z*2 + h
            if c1 == 0: A(f"v_add_f32_dpp v{t}, v{a+2*h+1}, v{a+2*h} row_ror:8 row_mask:{1<<gg:#x} bank_mask:0x3")
            else:       A(f"v_add_f32_dpp v{t}, v{a+2*h}, v{a+2*h+1} row_ror:8 row_mask:{1<<gg:#x} bank_mask:0xc")
    def pk4(u):
        a = 64 + 4*(u % 3); t = u & 3; d = 76 + (u >> 2); o = []
        for k in range(1, 4):
            b = (t + k) & 3
            o.append(f"v_add_f32_dpp v{d}, v{a+b}, v{a+t if k == 1 else d} row_ror:{4*((t-b)&3)} row_mask:0xf bank_mask:{1<<t:#x}")
        return o
    def qk_group():
        u = st["qk"]; a = 64 + 4*(u % 3)
        g.wait(ids[4*u+3])
        pk = pk4(u-2) if (q4 and u >= 2) else []
        if pk and u == 2: A("s_nop 3")
        if pk and u == 3: A("s_nop 0")
        for j in range(4):
            p = 4*u + j
            if pk and j % 2 == 0: A(pk[j // 2])
            ops = [f"v[{16+4*j}:{19+4*j}]", f"a[{4*p}:{4*p+3}]"]
            if q4: ops.reverse()
            A(f"v_mfma_f32_16x16x32_bf16 v[{a}:{a+3}], {ops[0]}, {ops[1]}, {'0' if j == 0 else f'v[{a}:{a+3}]'}")
        st["qk"] += 1
        if pk: A(pk[2])
        elif u >= 2: qk_packgrp(u-2)
        if u == 15:
            if q4:
                for uu in (14, 15):
                    for t_ in pk4(uu): A("s_nop 1"); A(t_)
            else:
                A("s_nop 1"); qk_packgrp(14); A("s_nop 3"); qk_packgrp(15)
                A("s_nop 0")
            A("v_cvt_pk_bf16_f32 v80, v76, v77"); A("v_cvt_pk_bf16_f32 v81, v78, v79")
            A("v_min_u32 v80, -2, v80"); A("v_min_u32 v81, -2, v81")
            publish("s", "buffer_store_dwordx2 v[80:81], v4, s[28:31], s62")
            if clean == 200: A("v_mov_b32 v14, v80"); A("v_mov_b32 v15, v81")
            stamp("scores published")
    def rowred(op, regs, srcs=None):
        for i, sh in enumerate((8, 4, 2, 1)):
            for k, r in enumerate(regs):
                s_ = srcs[k] if (srcs and i == 0) else r
                A(f"{op}_dpp v{r}, v{s_}, v{s_} row_ror:{sh} row_mask:0xf bank_mask:0xf")
            A("s_nop 0")
    def t_softmax(sp_):
        g.wait(sp_)
        if not no_s: check("s", schk, spoll)
        stamp("scores ok")
        yield
        for sp in range(4):
            for z in range(2):
                i = sp*2 + z; r = 32 + i
                A(f"v_lshlrev_b32 v{48+i}, 16, v{r}"); A(f"v_and_b32 v{56+i}, 0xffff0000, v{r}")
        yield
        for h in range(2):
            b = 48 + 8*h; m = 68 + 2*h
            A(f"v_max3_f32 v{m}, v{b}, v{b+1}, v{b+2}"); A(f"v_max3_f32 v{m}, v{m}, v{b+3}, v{b+4}"); A(f"v_max3_f32 v{m}, v{m}, v{b+5}, v{b+6}"); A(f"v_max_f32 v{m}, v{m}, v{b+7}")
        A("s_nop 1")
        rowred("v_max_f32", [68, 70])
        yield
        A("v_mul_f32 v66, s67, v68"); A("v_mul_f32 v67, s67, v70")
        for h in range(2):
            for i in range(8):
                r = 48 + 8*h + i
                A(f"v_fma_f32 v{r}, v{r}, s67, -v{66+h}")
        yield
        for r in range(48, 64):
            A(f"v_exp_f32 v{r}, v{r}")
            if r == 55: yield
        A("s_nop 0")
        yield
        for h in range(2):
            b = 48 + 8*h; l = 69 + 2*h
            A(f"v_add_f32 v{l}, v{b}, v{b+1}")
            for i in range(2, 8): A(f"v_add_f32 v{l}, v{l}, v{b+i}")
        A("s_nop 1")
        yield
        rowred("v_add_f32", [69, 71])
        A("s_mov_b32 exec_lo, 0x00010001"); A("s_mov_b32 exec_hi, 0x00010001")
        A("ds_write_b128 v142, v[68:71]")
        A("s_mov_b64 exec, -1")
        yield
        if wo_late and not no_wo:
            assert wo_n[0] == 28 or wo_hack
            if not wo_hack: g.wait(wo_last[0])
        A("s_waitcnt lgkmcnt(0)"); A("s_barrier")
        A("ds_read_b128 v[72:75], v143")
        if fl_s:
            A("v_mov_b32 v15, s0")
            check("f", lambda: A("v_cmp_ne_u32 vcc, s49, v15"), fpoll)
        yield
        A("s_waitcnt lgkmcnt(0)"); A("s_nop 1")
        rowred("v_max_f32", [76, 77], [72, 74])
        for h in range(2):
            A(f"v_sub_f32 v{72+2*h}, v{72+2*h}, v{76+h}"); A(f"v_sub_f32 v{68+2*h}, v{68+2*h}, v{76+h}")
        yield
        for h in range(2):
            A(f"v_mul_f32 v{72+2*h}, s67, v{72+2*h}"); A(f"v_mul_f32 v{68+2*h}, s67, v{68+2*h}")
        for h in range(2):
            A(f"v_exp_f32 v{72+2*h}, v{72+2*h}"); A(f"v_exp_f32 v{68+2*h}, v{68+2*h}")
        A("s_nop 0")
        for h in range(2): A(f"v_mul_f32 v{73+2*h}, v{72+2*h}, v{73+2*h}")
        A("s_nop 1")
        yield
        rowred("v_add_f32", [73, 75])
        A("v_rcp_f32 v73, v73"); A("v_rcp_f32 v75, v75"); A("s_nop 0")
        A("v_mul_f32 v68, v68, v73"); A("v_mul_f32 v70, v70, v75")
        yield
        for h in range(2):
            for i in range(8):
                r = 48 + 8*h + i
                A(f"v_mul_f32 v{r}, v{r}, v{68+2*h}")
        yield
        for h in range(2):
            for i in range(8):
                r = 48 + 8*h + i
                A(f"v_cvt_pk_bf16_f32 v{r}, v{r}, v{r}")
        yield
        for h in range(2):
            for i in range(8):
                r = 48 + 8*h + i; sp, z = divmod(i, 2)
                A(f"ds_write_b32 v136, v{r} offset:{h*2176 + sp*128 + z*64}")
            yield
        A("s_waitcnt lgkmcnt(0)")
        A("ds_read_b128 v[100:103], v137")
        yield
        A("s_waitcnt lgkmcnt(0)")
        aprep(0)
        stamp("softmax done")
        st["s_ok"] = True
        yield
    def rowred2(op, r, src=None):
        for i, sh in enumerate((8, 4, 2)):
            A("s_nop 1")
            A(f"{op}_dpp v{r}, v{r}, v{r} row_ror:{sh} row_mask:0xf bank_mask:0xf")
    def t_softmax4(sp_):
        g.wait(sp_)
        if not no_s: check("s", schk, spoll)
        stamp("scores ok")
        yield
        for i in range(8):
            A(f"v_lshlrev_b32 v{48+2*i}, 16, v{32+i}"); A(f"v_and_b32 v{49+2*i}, 0xffff0000, v{32+i}")
        yield
        A("v_max3_f32 v68, v48, v49, v50")
        for i in range(51, 63, 2): A(f"v_max3_f32 v68, v68, v{i}, v{i+1}")
        A("v_max_f32 v68, v68, v63")
        rowred2("v_max_f32", 68)
        yield
        A("v_mul_f32 v66, s67, v68")
        for r in range(48, 64): A(f"v_fma_f32 v{r}, v{r}, s67, -v66")
        yield
        for r in range(48, 64):
            A(f"v_exp_f32 v{r}, v{r}")
            if r == 55: yield
        yield
        A("v_add_f32 v69, v48, v49")
        for r in range(50, 64): A(f"v_add_f32 v69, v69, v{r}")
        yield
        rowred2("v_add_f32", 69)
        A("s_mov_b32 exec_lo, 0x00030003"); A("s_mov_b32 exec_hi, 0x00030003")
        A("ds_write_b64 v142, v[68:69]")
        A("s_mov_b64 exec, -1")
        yield
        if wo_late and not no_wo:
            assert wo_n[0] == 28
            g.wait(wo_last[0])
        A("s_waitcnt lgkmcnt(0)"); A("s_barrier")
        A("ds_read_b128 v[72:75], v143")
        if fl_s:
            A("v_mov_b32 v15, s0")
            check("f", lambda: A("v_cmp_ne_u32 vcc, s49, v15"), fpoll)
        yield
        A("s_waitcnt lgkmcnt(0)")
        A("v_max_f32 v76, v72, v74")
        rowred2("v_max_f32", 76)
        for r in (72, 74, 68): A(f"v_sub_f32 v{r}, v{r}, v76")
        for r in (72, 74, 68): A(f"v_mul_f32 v{r}, s67, v{r}")
        yield
        for r in (72, 74, 68): A(f"v_exp_f32 v{r}, v{r}")
        A("v_mul_f32 v73, v72, v73"); A("v_fma_f32 v73, v74, v75, v73")
        rowred2("v_add_f32", 73)
        A("v_rcp_f32 v73, v73"); A("s_nop 0")
        A("v_mul_f32 v68, v68, v73")
        yield
        for r in range(48, 64): A(f"v_mul_f32 v{r}, v{r}, v68")
        yield
        for r in range(48, 64): A(f"v_cvt_pk_bf16_f32 v{r}, v{r}, v{r}")
        yield
        for i in range(16):
            A(f"ds_write_b32 v136, v{48+i} offset:{i*32}")
            if i == 7: yield
        yield
        A("s_waitcnt lgkmcnt(0)")
        A("ds_read_b128 v[100:103], v137")
        yield
        A("s_waitcnt lgkmcnt(0)")
        aprep(0)
        stamp("softmax done")
        st["s_ok"] = True
        yield
    def t_zero():
        for r in range(108, 136, 2): A(f"v_mov_b64 v[{r}:{r+1}], 0")
        yield
        A("v_bfe_u32 v14, v0, 3, 1"); A("v_mul_u32_u24 v14, 0xaaaa, v14"); A("v_add_u32 v14, 0x4444, v14")
        if atm == 2:
            A("s_mov_b32 s4, 0x80018001"); A("s_mov_b32 s5, s4")
            A("v_and_b32 v44, 15, v0"); A("v_mad_u32_u24 v44, v10, 28, v44"); A("v_add_lshl_u32 v44, v44, -1, 1"); A("v_cndmask_b32 v44, v44, -4.0, s[4:5]")
            A("v_mov_b32 v13, s49"); A("v_mov_b32 v47, 0x403f0000"); A("v_mov_b32 v12, 1.0")
        elif atm:
            A("v_and_b32 v44, 15, v0"); A("v_mul_u32_u24 v45, 28, v10"); A("v_cmp_gt_u32 vcc, 14, v44"); A("v_cmp_lt_u32 s[4:5], 1, v44")
            A("v_add_lshl_u32 v45, v45, v44, 1"); A("v_mov_b32 v13, s49")
            A("v_cndmask_b32 v44, -4.0, v45, vcc"); A("v_cndmask_b32 v45, -4.0, v45, s[4:5]")
            A("v_lshlrev_b32 v46, 2, v0"); A("v_mov_b32 v47, 0xc1f80000")
            A("s_mov_b32 s4, 0x80008000"); A("s_mov_b32 s5, s4"); A("s_lshr_b64 s[6:7], s[4:5], 15")
        else:
            A("v_lshlrev_b32 v12, 4, v0"); A("v_lshrrev_b32 v12, v12, s17"); A("v_mov_b32 v13, s49")
        yield
    def aprep(m):
        b = 92 + 4*(m & 1)
        for j in range(4): A(f"v_and_b32 v{b+j}, v{100 + (m & 7)}, v{6+j}")
    def pv_unit():
        t = st["pv"]
        if t % 2 == 0 and t + 2 < 64:
            r = 100 + 4*(((t+2)//2) & 1)
            A(f"ds_read_b128 v[{r}:{r+3}], v137 offset:{(t+2)*8}")
        aprep(2*t+1)
        g.wait(ids[64+t])
        A(f"v_mfma_f32_16x16x32_bf16 v[84:87], v[92:95], a[{4*t}:{4*t+3}], {'0' if t == 0 else 'v[84:87]'}"); g.cyc -= 8
        if t + 1 < 64:
            if t % 2 == 1: A("s_waitcnt lgkmcnt(0)"); g.cyc -= 96
            aprep(2*t+2)
        else:
            A("s_nop 0")
        A(f"v_mfma_f32_16x16x32_bf16 v[88:91], v[96:99], a[{4*t}:{4*t+3}], {'0' if t == 0 else 'v[88:91]'}"); g.cyc -= 8
        st["pv"] += 1

    def raddr(b2):
        A("v_bfe_u32 v5, v0, 2, 2"); A("v_lshlrev_b32 v5, 11, v5"); A("v_lshl_add_u32 v5, v10, 16, v5"); A("v_and_b32 v11, 3, v0"); A("v_lshl_add_u32 v16, v11, 4, v5")
        A(f"s_add_u32 {b2}, s64, {4*65536}"); A(f"s_mov_b32 s66, {spin}")
    def oaddr(so):
        if smf:
            A("v_and_b32 v17, 1, v10"); A("v_lshlrev_b32 v17, 5, v17"); A("v_lshl_add_u32 v17, v11, 2, v17"); A("v_and_or_b32 v17, v10, 2, v17")
            A(f"s_lshr_b32 {so}, s63, 3"); A(f"s_mul_i32 {so}, {so}, 224"); A("s_mul_i32 s60, s54, 896"); A(f"s_add_u32 {so}, {so}, s60")
            A("s_and_b32 s60, s63, 1"); A("s_lshl_b32 s60, s60, 4"); A(f"s_add_u32 {so}, {so}, s60")
            A("s_and_b32 s60, s63, 6"); A("s_lshl_b32 s61, s60, 5"); A(f"s_add_u32 {so}, {so}, s61")
            A("s_cmp_eq_u32 s60, 6"); A("s_cselect_b32 s61, 15, 0x000f000f")
            return
        A("v_lshlrev_b32 v17, 5, v10"); A("v_lshl_add_u32 v17, v11, 1, v17")
        A(f"s_lshr_b32 {so}, s63, 3"); A(f"s_mul_i32 {so}, {so}, 224"); A("s_mul_i32 s60, s54, 896"); A(f"s_add_u32 {so}, {so}, s60")
        A("s_and_b32 s60, s63, 3"); A("s_lshl_b32 s60, s60, 3"); A(f"s_add_u32 {so}, {so}, s60")
        A("s_and_b32 s60, s63, 4"); A("s_lshl_b32 s60, s60, 5"); A(f"s_add_u32 {so}, {so}, s60")
        A("s_cmp_eq_u32 s60, 0"); A("s_cselect_b32 s61, 0x000f000f, 15")
    RB2 = "s97" if er_at else "s65"
    RL = [f"buffer_load_dwordx4 v[48:51], v16, s[28:31], s64 offen {red_mod}", f"buffer_load_dwordx4 v[52:55], v16, s[28:31], {RB2} offen {red_mod}"]
    er = []
    active = []
    qp = None; sp_ = None; wf = None
    started = set()
    Dp = Dfun if Dfun else (lambda p: D if p < 64 + D else DV)
    p = D0
    fbq = {}; fbg = {}; fbn = [0, 0]
    def fb_pre(p):
        for c, (idv, k) in list(fbq.items()):
            if p == c + fb["lat"]:
                g.wait(idv)
                A(f"s_mov_b32 s0, {fb['Dbase']}")
                for x, t in fb["thr"](c):
                    A(f"v_cmp_le_u32 vcc, {c + x}, v{126 + k % 2}"); A("s_bcnt1_i32_b32 s58, vcc_lo")
                    A(f"s_cmp_ge_u32 s58, {t}"); A("s_addc_u32 s0, s0, 0")
                for x, t in (fb["gthr"](c) if fb.get("gp") else []):
                    A(f"v_cmp_le_u32 vcc, {x}, v{126 + k % 2}"); A("s_bcnt1_i32_b32 s58, vcc_hi")
                    A(f"s_cmp_ge_u32 s58, {4*t}"); A("s_addc_u32 s0, s0, 0")
                if fb.get("ds3") and p >= 66: A("s_add_u32 s0, s0, s101")
                if stamps: A(f"s_add_u32 s{8 if p < 64 else 9}, s{8 if p < 64 else 9}, s0"); fbn[0 if p < 64 else 1] += 1
        for c, (idv, j) in list(fbg.items()):
            if p == c + fb["glat"]:
                g.wait(idv)
                A("s_mov_b64 exec, 1")
                g.vmem(f"buffer_store_byte v{120 + j % 2}, off, s[28:31], s6"); A("s_mov_b64 exec, -1")
    def fb_post(p):
        if p in fb["pub"]:
            k = fb["pub"].index(p)
            A(f"v_mov_b32 v{124 + k % 2}, {p}"); A("s_mov_b64 exec, 1")
            g.vmem(f"buffer_store_byte v{124 + k % 2}, off, s[28:31], s4 {fb.get('st', '')}")
            A("s_mov_b64 exec, -1")
        if p in fb.get("gp", []):
            j = fb["gp"].index(p)
            A(f"s_cmp_eq_u32 s5, {j & 15}"); A(f"s_cselect_b32 s58, 0, 0x1000"); A("s_cselect_b32 s6, s7, 0x7f000000")
            A(f"v_mov_b32 v{120 + j % 2}, 1"); A("s_mov_b64 exec, 1")
            fbg[p] = (g.vmem(f"buffer_atomic_add v{120 + j % 2}, off, s[16:19], s58 offset:{(j&1)*128 + (j>>1)*4} sc0 sc1"), j)
            A("s_mov_b64 exec, -1")
        if p in fb["cps"]:
            k = fb["cps"].index(p)
            fbq[p] = (g.vmem(f"buffer_load_ubyte v{126 + k % 2}, v123, s[28:31], s1 offen {fb.get('ld', 'nt')}"), k)
    if fb: dyn = dict(Dmin=fb["Dmin"], Dmax=fb["Dmax"], sched={})
    def dynwait(p):
        if fb: fb_pre(p)
        if p in dyn["sched"]:
            base, ah, a3 = dyn["sched"][p]
            A(f"s_mul_i32 s0, s1, {ah}"); A(f"s_mul_i32 s58, s101, {a3}"); A("s_add_u32 s0, s0, s58"); A(f"s_add_u32 s0, s0, {base}")
        dmax = dyn["Dmax"](p) if callable(dyn["Dmax"]) else dyn["Dmax"]
        dmin = dyn["Dmin"](p) if callable(dyn["Dmin"]) else dyn["Dmin"]
        if p - dmax >= 0: g.wait(ids[p - dmax])
        used = False
        for d in range(dmax - 1, dmin - 1, -1):
            if p - d < 0 or g.done >= ids[p - d]: continue
            A(f"s_cmp_gt_u32 s0, {d}"); A(f"s_cbranch_scc1 L_dp{p}"); A(f"s_waitcnt vmcnt({g.vm - 1 - ids[p - d]})"); used = True
        if used: g.lab(f"L_dp{p}")
        return dmax
    if pure:
        for p in range(D0, 128):
            if dyn: dynwait(p)
            elif thr and p >= Dd:
                g.wait(ids[p - Dd])
                A(f"s_cmp_gt_u32 s0, {thr(p)}"); A(f"s_cbranch_scc1 L_dp{p}")
                A(f"s_waitcnt vmcnt({g.vm - 1 - ids[p - Dp(p)]})")
                g.lab(f"L_dp{p}")
            else: g.wait(ids[p - Dp(p)])
            issue(p)
            if fb: fb_post(p)
            if p in pst: stamp(f"p{p}")
            if pure >= 2 and p == st_at and st_mod is not None:
                if st_mask: A(f"s_mov_b64 exec, {st_mask}")
                g.vmem(f"buffer_store_dwordx4 v[80:83], v3, s[28:31], s62 offen {st_mod}")
                if st_mask: A(f"s_mov_b64 exec, -1")
            if pure >= 3 and p == 64 + VP:
                for sp in range(ld_n): g.vmem(f"buffer_load_dwordx4 v[{32+4*sp}:{35+4*sp}], v3, s[28:31], s61 offen offset:{sp*1024} {ld_mod}")
            if pure >= 4 and p in (50, 97): A("s_barrier")
        A("s_waitcnt vmcnt(0)")
        p = 128; st["pv"] = 64; wo_n[0] = 28
    while p < 128 or st["pv"] < 64:
        d = Dp(p)
        if p < 128:
            t_ = thr(p) if thr else None
            if dyn: d = dynwait(p)
            elif t_ is None:
                g.wait(ids[max(p - d, 0)])
            else:
                g.wait(ids[max(p - Dd, 0)])
                if g.done < ids[p - d]:
                    A(f"s_cmp_gt_u32 s0, {t_}"); A(f"s_cbranch_scc1 L_dp{p}")
                    A(f"s_waitcnt vmcnt({g.vm - 1 - ids[p - d]})")
                    g.lab(f"L_dp{p}")
                d = Dd
            if p >= 64:
                assert st["q_ok"]
                while st["qk"] <= (p - 64)//4: qk_group()
            issue(p)
            if fb: fb_post(p)
            if p in pst: stamp(f"p{p}")
            if p in wq_at and not no_q: wq_issue(wq_at.index(p))
            for _ in range(wo_at.count(p)): wo_issue(None, p)
            if p in wo_a: wo_issue("a", p)
            if p in wo_b: wo_issue("b", p)
            if p == ep_at: setup2()
            if p == pre_at: pre.append(g.vmem(f"{PRE} offen {(fm['pre'] if fm else fmod) if xchk else pub_mod}"))
            if p == pre_at and atm: pre.append(g.vmem(f"buffer_store_dwordx4 v[40:43], {'v45' if gs and gs != 64 else 'v3'}, s[28:31], s64 offen sc1" if atm == 2 else "buffer_store_dwordx2 v[40:41], v4, s[28:31], s64 offen sc1"))
            if xchk and p in xg_at: xg.append(g.vmem(f"buffer_load_dword v115, v109, s[28:31], s11 offen {xg_mod}"))
            if p in dummy:
                A(f"s_add_u32 s58, s62, {0x1000000 + 0x100000 * dummy.index(p)}")
                g.vmem(f"buffer_store_dwordx4 v[80:83], v3, s[28:31], s58 offen {dummy_mod}")
            if p == tlb_o:
                A("s_mul_i32 s58, s54, 896")
                g.vmem(f"buffer_load_dword v{46 if atm == 2 else 118}, off, s[44:47], s58 {tlb_omod}")
            if p == tlb_v:
                if tlb_vn == 1: g.vmem(f"buffer_load_dword v118, off, s[24:27], s51 nt")
                else:
                    A(f"v_and_b32 v118, {tlb_vn-1}, v0"); A(f"v_mul_u32_u24 v118, {(1<<20)//tlb_vn}, v118")
                    g.vmem(f"buffer_load_dword v118, v118, s[24:27], s51 offen nt")
            if p == er_at:
                assert st["s_ok"]
                A("s_cmp_eq_u32 s48, 0"); A("s_cselect_b32 s64, s64, 0x7f000000")
                raddr(RB2); g.vmem(RL[0]); er.append(g.vmem(RL[1])); oaddr("s59")
            if p == clean:
                assert st["qk"] == 16
                if cl_sel & 4: A("s_mov_b32 exec_lo, 0x00010001"); A("s_mov_b32 exec_hi, 0x00010001")
                if cl_sel & 1: g.vmem(f"buffer_store_dwordx2 v[80:81], v4, s[28:31], s62 offen {cl_mod}")
                if cl_sel & 8:
                    assert st["s_ok"]
                    A("s_mov_b64 exec, 0x01010101")
                    g.vmem(f"buffer_store_dword v80, v3, s[28:31], s65 offen {cl_mod}")
                A("s_mov_b64 exec, 1")
                if cl_sel & 2: g.vmem(f"buffer_store_dword v110, off, s[28:31], s97 {cl_mod}")
                A("s_mov_b64 exec, -1")
            if p == KP: qp = qpoll()
            if p == sp_v:
                for i in range(sp_vn): A(f"s_buffer_load_dword s1, s[24:27], s51 offset:{i * (1 << 20) // sp_vn}")
            if p == sp_o: A("s_buffer_load_dword s1, s[44:47], 0")
            if p == fl_at:
                if fl_s: A(f"s_buffer_load_dword s0, s[28:31], {'s96' if gs else 's65'} offset:{FO}")
                else: fpoll()
            if fl_at and p == fl_at + d + 1 and not fl_s: active.append(t_flag())
            if p == 64 + VP:
                assert st["qk"] == 16
                sp_ = spoll()
        landed = min(p - d, 127) if p < 128 else 127
        if not no_q and "qproj" not in started and p >= wq_at[-1] + d: active.append(t_qproj()); started.add("qproj")
        if qp is not None and "qshare" not in started and p >= (KP if wo_late else max(KP, wo_at[-1])) + d:
            active.append(t_qshare(qp)); started.add("qshare")
        if "qshare" in started and "wf" not in started and p >= (wf_at or 0) and not wo_late: active.append(t_wofrag()); started.add("wf")
        if wo_late and st["s_ok"] and "wf" not in started: wf = t_wofrag(); started.add("wf")
        if wf is not None:
            try: next(wf)
            except StopIteration: wf = None
        if sp_ is not None and "softmax" not in started and p >= 64 + VP + d: active.insert(0, (t_softmax4 if q4 else t_softmax)(sp_)); started.add("softmax")
        if smf and st["qk"] == 16 and "zero" not in started: active.append(t_zero()); started.add("zero")
        c0 = g.cyc
        while g.cyc - c0 < (BUDf(p) if BUDf else BUD) or p >= 128:
            if st["q_ok"] and st["qk"] < 16 and 4*st["qk"] + 3 <= landed: qk_group(); continue
            if st["s_ok"] and st["pv"] < 64 and 64 + st["pv"] <= landed and not active: pv_unit(); continue
            if active:
                try: next(active[0])
                except StopIteration: active.pop(0)
                continue
            break
        p += 1
    assert wo_n[0] == 28 and st["pv"] == 64 and not active and wf is None
    stamp("V done")
    A("s_nop 7")
    for r in range(4): A(f"v_add_f32_dpp v{64+r}, v{88+r}, v{84+r} row_ror:8 row_mask:0xf bank_mask:0xf")
    A("v_cvt_pk_bf16_f32 v68, v64, v65"); A("v_cvt_pk_bf16_f32 v69, v66, v67")
    if smf:
        assert not clean and not er_at
        A("ds_write2_b32 v140, v68, v69 offset1:144")
        if not atm: A("v_mov_b32 v75, 0"); A("v_mov_b32 v79, 0")
        A("s_waitcnt lgkmcnt(0)"); A("s_barrier")
        for hd in range(2): A(f"ds_read_b128 v[{32+4*hd}:{35+4*hd}], v141 offset:{hd*272}")
        def S(tau, hd):
            a = 108 + 4*tau if tau < 7 else 40; w = (144 + tau*16 if tau < 7 else 16) + 8*hd
            A(f"v_smfmac_f32_16x16x64_bf16 v[{a}:{a+3}], v[{32+4*hd}:{35+4*hd}], v[{w}:{w+7}], v14")
        def P(tau):
            for h in range(2):
                a = (108 + 4*tau if tau < 7 else 40) + 2*h; d = 72 + 4*h + (tau & 1) + 2*(tau >> 2)
                A(f"v_add_f32_dpp v{d}, v{a}, v{a+1} quad_perm:[0,1,2,3] row_mask:{5 << ((tau >> 1) & 1):#x} bank_mask:0xf")
        Z = lambda i: A(f"v_add_f32 v{72+i}, v{72+i}, v{76+i}")
        if atm == 2:
            A("s_mov_b64 vcc, s[4:5]")
            AV = 'v46' if gs and gs != 64 else 'v4'; A2 = f"s65 offen offset:{8*(gs or 64)}"
            if gs and 8*gs > 4095: A(f"s_add_u32 s97, s65, {8*gs}"); A2 = "s97 offen"
            A("s_waitcnt lgkmcnt(1)"); S(1, 0); S(3, 0); A("s_waitcnt lgkmcnt(0)"); S(1, 1); S(3, 1)
            for tau in (5, 7, 0): S(tau, 0); S(tau, 1)
            S(2, 0); P(1); P(3); S(2, 1); P(5); Z(1); S(4, 0); P(7); Z(3); S(4, 1); P(0); P(2)
            A("v_permlane32_swap_b32 v73, v75"); S(6, 0); A("v_add_f32 v73, v73, v75"); Z(0); S(6, 1)
            A("v_cndmask_b32_dpp v73, v73, v12, vcc row_ror:15 row_mask:0xf bank_mask:0xf")
            A("v_cvt_f64_f32 v[82:83], v73")
            A(f"buffer_atomic_add_f64 v[82:83], {AV}, s[28:31], {A2} {at_mod}")
            P(4)
            A("s_mul_i32 s59, s48, 224"); A("s_mul_i32 s60, s54, 896"); A("s_add_u32 s59, s59, s60")
            P(6); Z(2); A(f"s_cmp_lg_u32 s65, {AC}"); A("s_nop 0"); A("v_permlane32_swap_b32 v72, v74"); A("s_nop 0"); A("v_add_f32 v72, v72, v74")
            A("s_nop 1")
            A("v_cndmask_b32_dpp v72, v72, v12, vcc row_ror:1 row_mask:0xf bank_mask:0xf")
            A("v_cvt_f64_f32 v[80:81], v72")
            A(f"buffer_atomic_add_f64 v[80:81], {AV}, s[28:31], s65 offen {at_mod}")
            stamp("out published")
            A("v_cvt_f64_f32 v[66:67], v73"); A("v_cvt_f64_f32 v[64:65], v72")
            for r, o, ad, off in ((82, 66, 45, 28), (80, 64, 44, 0)):
                A("s_waitcnt vmcnt(1)")
                A(f"v_add_f64 v[{o}:{o+1}], v[{r}:{r+1}], v[{o}:{o+1}]")
                A(f"v_xor_b32_dpp v5, v{r+1}, v47 row_newbcast:0 row_mask:0xf bank_mask:0x3")
                A(f"v_xor_b32_dpp v5, v{r+1}, v47 row_newbcast:15 row_mask:0xf bank_mask:0xc")
                A(f"v_cvt_f32_f64 v{r}, v[{o}:{o+1}]")
                A(f"v_or_b32 v{ad}, v5, v44")
                A(f"v_cvt_pk_bf16_f32 v{r}, v{r}, v{r}")
                A(f"buffer_store_short v{r}, v{ad}, s[44:47], s59 offen offset:{off} {fin_mod}")
            A("s_cbranch_scc1 L_noep")
            A("v_cmp_eq_u32 vcc, 0, v5"); A("s_and_b64 exec, vcc, 2")
            A("buffer_store_dword v13, off, s[28:31], 0 sc1")
        elif atm:
            A("s_waitcnt lgkmcnt(1)"); S(1, 0); S(3, 0); A("s_waitcnt lgkmcnt(0)"); S(1, 1); S(3, 1)
            for tau in (5, 7, 0): S(tau, 0); S(tau, 1)
            S(2, 0); P(1); P(3); S(2, 1); P(5); Z(1); S(4, 0); P(7); Z(3); S(4, 1); P(0); P(2)
            A("v_permlane32_swap_b32 v73, v75"); S(6, 0); A("v_add_f32 v73, v73, v75"); Z(0)
            A("v_cndmask_b32 v81, v73, 1.0, s[6:7]"); S(6, 1)
            A(f"buffer_atomic_add_f32 v81, v46, s[28:31], s65 offen offset:256 {at_mod}")
            P(4)
            A("s_mul_i32 s59, s48, 224"); A("s_mul_i32 s60, s54, 896"); A("s_add_u32 s59, s59, s60"); A(f"s_cmp_lg_u32 s65, {AC}"); A("s_nop 0")
            P(6); Z(2); A("s_nop 1"); A("v_permlane32_swap_b32 v72, v74"); A("s_nop 0"); A("v_add_f32 v72, v72, v74")
            A("v_cndmask_b32 v80, v72, 1.0, s[4:5]")
            A(f"buffer_atomic_add_f32 v80, v46, s[28:31], s65 offen {at_mod}")
            stamp("out published")
            for r, o, bc, ad, off in ((81, 73, 0, 45, 24), (80, 72, 15, 44, 0)):
                A("s_waitcnt vmcnt(1)")
                A(f"v_add_f32_dpp v5, v{r}, v47 row_newbcast:{bc} row_mask:0xf bank_mask:0xf")
                A(f"v_add_f32 v{r}, v{r}, v{o}")
                A(f"v_or_b32 v{ad}, v5, v{ad}")
                A(f"v_cvt_pk_bf16_f32 v{r}, v{r}, v{r}")
                A(f"buffer_store_short v{r}, v{ad}, s[44:47], s59 offen offset:{off} {fin_mod}")
            A("s_cbranch_scc1 L_noep")
            A("s_mov_b64 exec, 1")
            A("buffer_store_dword v13, v5, s[28:31], 0 offen sc1")
        else:
            A("s_waitcnt lgkmcnt(1)"); S(0, 0); S(1, 0); A("s_waitcnt lgkmcnt(0)"); S(0, 1); S(1, 1)
            for tau in (2, 3, 4): S(tau, 0); S(tau, 1)
            S(5, 0); P(0); P(1); S(5, 1); P(2); P(3); S(6, 0); Z(0); Z(1); P(4); S(6, 1)
            P(5); Z(3); A("s_nop 1"); A("v_permlane32_swap_b32 v73, v75"); A("s_nop 0"); A("v_add_f32 v73, v73, v75")
            P(6); Z(2); A("v_perm_b32 v81, v73, v12, s13"); A("s_nop 0"); A("v_permlane32_swap_b32 v72, v74"); A("s_nop 0"); A("v_add_f32 v72, v72, v74")
            A("v_perm_b32 v80, v72, v73, s12")
            A(f"buffer_store_dwordx2 v[80:81], v4, s[28:31], s65 offen {out_mod}")
    else:
        A("ds_write_b64 v140, v[68:69]")
        A("v_mov_b32 v75, 0"); A("v_mov_b32 v79, 0"); A("v_mov_b32 v12, s17"); A("v_mov_b32 v13, s49")
        A("s_waitcnt lgkmcnt(0)"); A("s_barrier")
        for kk in range(4): A(f"ds_read_b128 v[{32+4*kk}:{35+4*kk}], v141 offset:{kk*64}")
        def opack(tau, h):
            a = 108 + 4*tau + 2*h; d = 72 + 4*h + (tau & 3)
            A(f"v_add_f32_dpp v{d}, v{a}, v{a+1} quad_perm:[0,1,2,3] row_mask:{1 << (tau >> 2):#x} bank_mask:0xf")
        def omfma(tau, kk):
            a = 108 + 4*tau; w = 144 + (tau*4 + kk)*4
            A(f"v_mfma_f32_16x16x32_bf16 v[{a}:{a+3}], v[{32+4*kk}:{35+4*kk}], v[{w}:{w+3}], {'0' if kk == 0 else f'v[{a}:{a+3}]'}")
        sh = []
        if er_at:
            L0 = g.L; g.L = []; g.wait(er[0]); chk24(48, "s17"); A("s_mov_b64 s[0:1], vcc"); sh = g.L; g.L = L0
        for kk in range(4):
            A(f"s_waitcnt lgkmcnt({3-kk})")
            for tau in range(4):
                omfma(tau, kk)
                if kk >= 1 and sh: g.L.append(sh.pop(0))
        assert not sh
        n = 0; pk = [(t_, h) for t_ in range(4) for h in range(2)]
        for kk in range(4):
            for tau in range(4, 7):
                omfma(tau, kk); n += 1
                if n >= 5 and n < 12: opack(*pk.pop(0))
        opack(*pk.pop(0)); assert not pk
        A("v_add_f32 v75, v75, v79"); A("s_mov_b32 exec_hi, 0"); A("s_nop 1")
        for tau in range(4, 7):
            opack(tau, 0); opack(tau, 1)
        for i in range(3): A(f"v_add_f32 v{72+i}, v{72+i}, v{76+i}")
        pack24(72, 12)
        A(f"buffer_store_dwordx4 v[80:83], v3, s[28:31], s65 offen {out_mod}")
    if clean == 200:
        if cl_sel & 4: A("s_mov_b32 exec_lo, 0x00010001"); A("s_mov_b32 exec_hi, 0x00010001")
        else: A("s_mov_b64 exec, -1")
        A(f"buffer_store_dwordx2 v[14:15], v4, s[28:31], s62 offen {cl_mod}")
    def reducer():
        stamp("out published")
        A("s_cmp_lg_u32 s48, 0"); A("s_cbranch_scc1 L_noep" if stamps else "s_cbranch_scc1 L_end")
        if no_red: A("s_branch L_noep")
        def rround(): A(RL[0]); A(RL[1])
        if er_at: A("s_mov_b64 exec, s[0:1]")
        else:
            if not smf: A("s_mov_b64 exec, -1")
            raddr(RB2); rround(); oaddr("s59")
            A("s_branch L_r_wait")
        g.lab("L_r_poll")
        rround()
        A("s_sub_u32 s66, s66, 1"); A("s_cmp_eq_u32 s66, 0"); A("s_cbranch_scc1 L_end")
        g.lab("L_r_wait")
        A(f"s_waitcnt vmcnt(0)")
        chk24(48, "s17")
        A("s_and_b64 exec, exec, vcc")
        A("s_cbranch_execnz L_r_poll")
        A("s_mov_b64 exec, -1")
        sum24(48)
        A("s_nop 1")
        A("v_permlane16_swap_b32 v48, v49")
        A("s_nop 0")
        A("v_add_f32 v48, v48, v49"); A("s_nop 1")
        A("v_add_f32_dpp v48, v48, v48 row_ror:4 row_mask:0xf bank_mask:0xf"); A("s_nop 1")
        A("v_add_f32_dpp v48, v48, v48 row_ror:8 row_mask:0xf bank_mask:0xf")
        A("s_mov_b32 exec_lo, s61" if smf else "s_mov_b32 exec_lo, 0x000f000f"); A("s_mov_b32 exec_hi, s61")
        A("v_cvt_pk_bf16_f32 v48, v48, v48")
        A(f"buffer_store_short v48, v17, s[44:47], s59 offen {fin_mod}")
        A("s_mov_b64 exec, 1")
        A("s_cmp_lg_u32 s2, 0"); A("s_cbranch_scc1 L_noep")
        A("buffer_store_dword v13, off, s[28:31], 0 sc1")
    if not atm: reducer()
    g.lab("L_noep")
    if stamps:
        if endwait: A("s_waitcnt vmcnt(0)")
        stamp("end")
        A("s_waitcnt lgkmcnt(0)")
        if fb:
            for i in range(2):
                A(f"s_mul_i32 s58, s{8+i}, {round(6400 / fbn[i])}"); A("s_lshr_b32 s58, s58, 6"); A(f"s_add_u32 s{72+2*i}, s70, s58"); A(f"s_addc_u32 s{73+2*i}, s71, 0")
        if dbg:
            A("s_mov_b64 exec, -1"); A("v_mov_b32 v32, 0"); A("s_not_b32 s58, s70"); A("v_writelane_b32 v32, s58, 0")
            for k in range(g.nst): A(f"v_writelane_b32 v32, s{70+2*k}, {k+1}")
            A("s_mov_b32 s44, s16"); A("s_mov_b32 s45, s17"); A("s_mov_b32 s46, 256"); A("v_lshlrev_b32 v33, 2, v0")
            A(f"s_mov_b64 exec, {(1 << (g.nst+1)) - 1}")
            A("buffer_atomic_umax v32, v33, s[44:47], 0 offen sc1")
            A("s_branch L_end")
        A("s_mov_b64 exec, 1"); A("s_lshl_b32 s58, s2, 2"); A("s_add_u32 s58, s58, s48"); A(f"s_mul_i32 s58, s58, {g.nst*8}"); A(f"s_add_u32 s58, s58, {STAMP}")
        for k in range(g.nst):
            A(f"v_mov_b32 v32, s{70+2*k}"); A(f"v_mov_b32 v33, s{71+2*k}")
            A(f"buffer_store_dwordx2 v[32:33], off, s[28:31], s58 offset:{8*k}"); A("s_nop 1")
    g.lab("L_end"); A("s_endpgm")
    g.L += ['.section .rodata,"a"', ".p2align 6", f".amdhsa_kernel {KN}",
            "  .amdhsa_next_free_vgpr 512", "  .amdhsa_next_free_sgpr 102", "  .amdhsa_accum_offset 256",
            "  .amdhsa_group_segment_fixed_size 0", "  .amdhsa_kernarg_size 64", "  .amdhsa_user_sgpr_count 2",
            "  .amdhsa_user_sgpr_kernarg_segment_ptr 1", "  .amdhsa_system_sgpr_workgroup_id_x 1", ".end_amdhsa_kernel"]
    if hop: g.L = paginate(g.L, eoff)
    return "\n".join(g.L) + "\n", g.nst

if __name__ == "__main__":
    cfgs = {}
    exec(open(sys.argv[1]).read())
    for n, c in cfgs.items():
        t, nst = gen(**c)
        open(n + ".s", "w").write(t)
    print(" ".join(n + ".s" for n in cfgs), "nst", nst)
```
